```python
import torch

def _softmax(x, axis=-1):
    return torch.softmax(x, dim=axis)
def _gelu(x):
    return torch.nn.functional.gelu(x, approximate="tanh")
def _silu(x):
    return torch.nn.functional.silu(x)
def _sigmoid(x):
    return torch.sigmoid(x)
def _layernorm(x, axis=-1, eps=1e-5):
    m = x.mean(dim=axis, keepdim=True)
    v = x.var(dim=axis, keepdim=True, unbiased=False)
    return (x - m) / torch.sqrt(v + eps)
def _scatter_add(tgt, idx, src, axis=0):
    return tgt.clone().index_add_(axis, idx, src)
def _segment_sum(src, seg, n):
    out = torch.zeros((n,) + src.shape[1:], dtype=src.dtype)
    return out.index_add_(0, seg, src)
def _pad(x, pw):
    flat = tuple(v for pair in reversed(pw) for v in pair)
    return torch.nn.functional.pad(x, flat)

kernel_name = 'parallel_sum__spectral_gfnet__glu_gated_geglu__prompt'

def setup_inputs():

    _w = (lambda a: (lambda t: t.to(torch.bfloat16) if t.is_floating_point() else t)(torch.as_tensor(a)))
    def _A_setup():
        B, S, D = 1, 2048, 448
        Df = D // 2 + 1
        return {
            "x": _w((lambda *s: torch.randn(*s, dtype=torch.bfloat16) * 0.05)(B, S, D)),
            "w_r": _w((lambda *s: torch.randn(*s, dtype=torch.bfloat16) * 0.8)(S, Df) * 0.02),
            "w_i": _w((lambda *s: torch.randn(*s, dtype=torch.bfloat16) * 0.8)(S, Df) * 0.02),
        }
    _A_in = _A_setup()

    def _B_setup():
        B, S, Dm, Df = 1, 2048, 448, 1792
        return {
            "x": _w((lambda *s: torch.randn(*s, dtype=torch.bfloat16) * 0.05)(B, S, Dm)),
            "w_gate": _w((lambda *s: torch.randn(*s, dtype=torch.bfloat16) * 0.4)(Dm, Df) * (Dm ** -0.5)),
            "w_up": _w((lambda *s: torch.randn(*s, dtype=torch.bfloat16) * 0.4)(Dm, Df) * (Dm ** -0.5)),
            "w_down": _w((lambda *s: torch.randn(*s, dtype=torch.bfloat16) * 0.4)(Df, Dm) * (Df ** -0.5)),
        }
    _B_in = _B_setup()

    return {
        "A_x": _A_in["x"],
        "A_w_r": _A_in["w_r"],
        "A_w_i": _A_in["w_i"],
        "B_x": _B_in["x"],
        "B_w_gate": _B_in["w_gate"],
        "B_w_up": _B_in["w_up"],
        "B_w_down": _B_in["w_down"],
    }

def reference(A_x, A_w_r, A_w_i, B_x, B_w_gate, B_w_up, B_w_down):
    def _A_ref(x, w_r, w_i):
        B, S, D = x.shape
        X = (lambda x, axes=(-2,-1): torch.fft.rfft2(x.float(), dim=axes))(x, axes=(-2, -1))
        W = w_r + 1j * w_i
        X = X * W
        y = (lambda x, s, axes=(-2,-1): torch.fft.irfft2(x, s=s, dim=axes).to(torch.bfloat16))(X, (S, D), axes=(-2, -1))
        return y

    def _B_ref(x, w_gate, w_up, w_down):
        g = torch.einsum("bsd,df->bsf", x, w_gate)
        u = torch.einsum("bsd,df->bsf", x, w_up)
        h = _gelu(g) * u
        return torch.einsum("bsf,fd->bsd", h, w_down)

    x = A_x
    xn = _layernorm(x, axis=-1)
    return x + _A_ref(xn, A_w_r, A_w_i) + _B_ref(xn, B_w_gate, B_w_up, B_w_down)
```

```python
import numpy as np

S, D, F, NK = 2048, 448, 1792, 225
NT3 = 29
NSTEP = 112 + NT3
OFF_HZ = 0
SZ_HZ = 64 * NSTEP * 1024
OFF_WDF = OFF_HZ + SZ_HZ
SZ_WDF = 14 * 112 * 1024
OFF_WT = OFF_WDF + SZ_WDF
SZ_WT = 225 * 8192
OFF_UF = OFF_WT + SZ_WT
SZ_UF = 512 * 64 * 64
WS_BYTES = 268435456

def bf16(x):
    u = int(np.float32(x).view(np.uint32))
    return ((u + 0x7FFF + ((u >> 16) & 1)) >> 16) & 0xFFFF

def f32hex(x):
    return "0x%08x" % int(np.float32(x).view(np.uint32))

class Asm:
    def __init__(self):
        self.l = []
    def __call__(self, s):
        self.l.append("    " + s)
    def label(self, s):
        self.l.append(s + ":")
    def raw(self, s):
        self.l.append(s)
    def c(self, s):
        self.l.append("    ; " + s)
    def text(self):
        return "\n".join(self.l) + "\n"

def srd(a, sd, ptr_lo, nbytes):
    a(f"s_mov_b32 s{sd}, s{ptr_lo}")
    a(f"s_and_b32 s{sd+1}, s{ptr_lo+1}, 0xffff")
    a(f"s_mov_b32 s{sd+2}, {nbytes}")
    a(f"s_mov_b32 s{sd+3}, 0x00020000")

def kd(name, vgpr, sgpr, accum=None):
    if accum is None:
        accum = (vgpr + 3) // 4 * 4
    return f""".amdhsa_kernel {name}
  .amdhsa_next_free_vgpr {vgpr}
  .amdhsa_next_free_sgpr {sgpr}
  .amdhsa_accum_offset {accum}
  .amdhsa_group_segment_fixed_size 0
  .amdhsa_kernarg_size 80
  .amdhsa_user_sgpr_count 2
  .amdhsa_user_sgpr_kernarg_segment_ptr 1
  .amdhsa_system_sgpr_workgroup_id_x 1
.end_amdhsa_kernel
"""

def khead(a, name):
    a.raw(f".globl {name}")
    a.raw(".p2align 8")
    a.raw(f".type {name},@function")
    a.label(name)
```

```python
from common import *

XF = 16
ACC = 128
BF = 192
SJ = 224
LDS_INV = 114688
K1_LDS = LDS_INV + 8 * 128

C1 = -2.0 * 0.7978845608028654 * 1.4426950408889634
C2 = C1 * 0.044715

def gen_k1(a, tabsym):
    khead(a, "k1_kernel")
    a("s_cmp_ge_u32 s2, 256")
    a("s_cbranch_scc1 K1_end")
    a("s_load_dwordx16 s[4:19], s[0:1], 0")
    a("s_load_dwordx4 s[20:23], s[0:1], 64")
    a("s_getpc_b64 s[58:59]")
    a(f"s_add_u32 s58, s58, {tabsym}@rel32@lo+4")
    a(f"s_addc_u32 s59, s59, {tabsym}@rel32@hi+12")
    a("v_lshrrev_b32 v1, 6, v0")
    a("s_nop 0")
    a("v_readfirstlane_b32 s52, v1")
    a("v_and_b32 v1, 63, v0")
    a("s_and_b32 s53, s2, 7")
    a("s_lshl_b32 s53, s53, 2")
    a("s_lshr_b32 s54, s2, 3")
    a("s_and_b32 s57, s54, 3")
    a("s_add_u32 s53, s53, s57")
    a("s_lshr_b32 s54, s54, 2")
    a("s_lshl_b32 s55, s54, 3")
    a("s_add_u32 s55, s55, s52")
    a("s_mov_b32 s60, 0x3f803f80")
    a("s_waitcnt lgkmcnt(0)")
    srd(a, 24, 4, S * D * 2)
    srd(a, 36, 22, WS_BYTES)
    srd(a, 40, 6, S * NK * 2)
    srd(a, 44, 8, S * NK * 2)
    srd(a, 48, 16, F * D * 2)
    a("s_cmp_ge_u32 s53, 28")
    a("s_cselect_b32 s28, s58, s12")
    a("s_cselect_b32 s29, s59, s13")
    a("s_cselect_b32 s32, s58, s14")
    a("s_cselect_b32 s33, s59, s15")
    a("s_and_b32 s29, s29, 0xffff")
    a("s_and_b32 s33, s33, 0xffff")
    a("s_cmp_ge_u32 s53, 28")
    a(f"s_mov_b32 s61, {D*F*2}")
    a(f"s_cselect_b32 s30, {448*1024}, s61")
    a(f"s_cselect_b32 s34, {448*1024}, s61")
    a("s_mov_b32 s31, 0x00020000")
    a("s_mov_b32 s35, 0x00020000")
    a("s_movk_i32 s61, 3584")
    a("s_cselect_b32 s56, 1024, s61")
    a("s_lshl_b32 s57, s53, 7")
    a("s_sub_u32 s61, s53, 28")
    a("s_lshl_b32 s61, s61, 8")
    a("s_and_b32 s62, s52, 1")
    a("s_lshl_b32 s63, s62, 7")
    a("s_add_u32 s61, s61, s63")
    a("s_cmp_ge_u32 s53, 28")
    a("s_cselect_b32 s57, s61, s57")
    a("v_and_b32 v2, 31, v1")
    a("v_lshlrev_b32 v2, 6, v2")
    a("v_add_u32 v2, s55, v2")
    a("s_movk_i32 s64, 896")
    a("v_mul_lo_u32 v2, v2, s64")
    a("v_lshrrev_b32 v3, 5, v1")
    a("v_lshl_add_u32 v2, v3, 4, v2")
    for t in range(28):
        a(f"buffer_load_dwordx4 v[{XF+4*t}:{XF+4*t+3}], v2, s[24:27], 0 offen offset:{32*t}")
    a("v_lshrrev_b32 v3, 3, v1")
    a("v_and_b32 v4, 7, v1")
    a("v_bfe_u32 v5, v3, 1, 1")
    a("v_lshlrev_b32 v5, 2, v5")
    a("v_xor_b32 v4, v4, v5")
    a("s_lshr_b32 s63, s52, 1")
    a("s_lshl_b32 s64, s63, 3")
    a("v_add_u32 v3, s64, v3")
    a("v_mul_lo_u32 v3, v3, s56")
    a("v_lshl_add_u32 v3, v4, 4, v3")
    a("v_add_u32 v3, s57, v3")
    a("s_mul_i32 s65, s62, 57344")
    a("s_lshl_b32 s64, s63, 10")
    a("s_add_u32 s65, s65, s64")
    a("s_lshl_b32 s66, s56, 5")
    a("s_mov_b32 s67, 0")
    a("s_cmp_eq_u32 s62, 0")
    a("s_cbranch_scc0 K1_dma1")
    for part, lab in ((0, None), (1, "K1_dma1")):
        if lab:
            a.label(lab)
        sb = 28 if part == 0 else 32
        for i in range(14):
            a("s_mov_b32 m0, s65")
            a("s_add_u32 s65, s65, 4096")
            a(f"buffer_load_dwordx4 v3, s[{sb}:{sb+3}], s67 offen lds")
            a("s_add_u32 s67, s67, s66")
        if part == 0:
            a("s_branch K1_dma_done")
    a.label("K1_dma_done")
    a("s_lshl_b32 s68, s2, 3")
    a("s_add_u32 s68, s68, s52")
    a("s_lshr_b32 s69, s68, 2")
    a("s_and_b32 s70, s68, 3")
    a("s_lshl_b32 s70, s70, 6")
    a("v_add_u32 v14, s70, v1")
    a("s_and_b32 s70, s69, 31")
    a("s_lshr_b32 s71, s69, 5")
    a("s_lshl_b32 s71, s71, 2")
    a("s_lshl_b32 s71, s71, 5")
    a("s_add_u32 s70, s70, s71")
    a("s_mul_i32 s70, s70, 450")
    a("v_lshlrev_b32 v15, 1, v14")
    a("v_add_u32 v15, s70, v15")
    for j in range(4):
        a(f"s_mov_b32 s71, {j*32*450}")
        a(f"buffer_load_ushort v{SJ+j}, v15, s[40:43], s71 offen")
        a(f"buffer_load_ushort v{SJ+4+j}, v15, s[44:47], s71 offen")
    a("s_lshr_b32 s72, s68, 4")
    a("s_and_b32 s73, s68, 15")
    a("s_min_u32 s74, s72, 111")
    a("s_min_u32 s75, s73, 13")
    a("s_lshl_b32 s76, s74, 4")
    a("v_lshrrev_b32 v12, 5, v1")
    a("v_lshlrev_b32 v12, 2, v12")
    a("v_add_u32 v12, s76, v12")
    a("s_movk_i32 s64, 896")
    a("v_mul_lo_u32 v12, v12, s64")
    a("v_and_b32 v13, 31, v1")
    a("s_lshl_b32 s76, s75, 5")
    a("v_add_u32 v13, s76, v13")
    a("v_lshl_add_u32 v12, v13, 1, v12")
    for i in range(8):
        off = (8 * (i >> 2) + (i & 3)) * 896
        if off < 4096:
            a(f"buffer_load_ushort v{SJ+8+i}, v12, s[48:51], 0 offen offset:{off}")
        else:
            a(f"s_movk_i32 s71, {off}")
            a(f"buffer_load_ushort v{SJ+8+i}, v12, s[48:51], s71 offen")
    a("v_lshrrev_b32 v4, 5, v1")
    a("v_bfe_u32 v5, v1, 2, 2")
    a("v_lshl_add_u32 v4, v4, 3, v5")
    a("v_lshlrev_b32 v4, 7, v4")
    a("v_bfe_u32 v6, v1, 4, 1")
    a("v_bfe_u32 v7, v1, 1, 1")
    a("v_lshl_add_u32 v6, v6, 1, v7")
    a("v_lshrrev_b32 v7, 1, v5")
    a("v_lshlrev_b32 v7, 2, v7")
    a("v_xor_b32 v6, v6, v7")
    a("v_lshl_add_u32 v4, v6, 4, v4")
    a("v_and_b32 v7, 1, v1")
    a("v_lshl_add_u32 v4, v7, 3, v4")
    a("v_xor_b32 v5, 64, v4")
    a("v_add_u32 v6, 57344, v4")
    a("v_add_u32 v7, 57344, v5")
    a("s_waitcnt vmcnt(30)")
    for i in range(4):
        a(f"v_dot2_f32_bf16 v{8+i}, v{XF+i}, s60, 0")
    for t in range(1, 28):
        for i in range(4):
            a(f"v_dot2_f32_bf16 v{8+i}, v{XF+4*t+i}, s60, v{8+i}")
    a("s_nop 3")
    a("v_add_f32 v8, v8, v9")
    a("v_add_f32 v10, v10, v11")
    a("v_add_f32 v8, v8, v10")
    a("v_mov_b32 v9, v8")
    a("s_nop 1")
    a("v_permlane32_swap_b32 v8, v9")
    a("s_nop 1")
    a("v_add_f32 v8, v8, v9")
    a(f"v_mul_f32 v8, {f32hex(1.0/448)}, v8")
    a("v_cvt_pk_bf16_f32 v9, v8, v8")
    a("v_and_b32 v9, 0xffff0000, v9")
    a("v_mov_b32 v10, 0")
    a("v_mov_b32 v11, 0")

    def prep(reg):
        a(f"v_lshlrev_b32 v12, 16, v{reg}")
        a(f"v_and_b32 v13, 0xffff0000, v{reg}")
        a("v_sub_f32 v12, v12, v9")
        a("v_sub_f32 v13, v13, v9")
        a("v_fmac_f32 v10, v12, v12")
        a("v_fmac_f32 v11, v13, v13")
        a(f"v_cvt_pk_bf16_f32 v{reg}, v12, v13")

    def trreads(t):
        bs = BF + 16 * (t & 1)
        for j in range(4):
            for q in range(2):
                a(f"ds_read_b64_tr_b16 v[{bs+4*j+2*q}:{bs+4*j+2*q+1}], v{4+j} offset:{t*2048+q*512}")

    for i in range(4):
        prep(XF + i)
    a("s_waitcnt vmcnt(28)")
    a("s_barrier")
    trreads(0)
    a("s_cmp_ge_u32 s53, 28")
    a("s_cbranch_scc1 K1_dft")

    def mainloop(dft):
        for t in range(28):
            if t + 1 < 28:
                if (t + 1) % 4 == 0:
                    c = (t + 1) // 4
                    a(f"s_waitcnt vmcnt({16 + 12 - 2*c})")
                    a("s_barrier")
                trreads(t + 1)
                a("s_waitcnt lgkmcnt(8)")
            else:
                a("s_waitcnt lgkmcnt(0)")
            bs = BF + 16 * (t & 1)
            xf = XF + 4 * t
            for j in range(4):
                acc = f"v[{ACC+16*j}:{ACC+16*j+15}]"
                cin = "0" if t == 0 else acc
                if dft:
                    a(f"v_mfma_f32_32x32x16_bf16 {acc}, v[{xf}:{xf+3}], v[{bs+4*j}:{bs+4*j+3}], {cin}")
                else:
                    a(f"v_mfma_f32_32x32x16_bf16 {acc}, v[{bs+4*j}:{bs+4*j+3}], v[{xf}:{xf+3}], {cin}")
                if t + 1 < 28:
                    prep(XF + 4 * (t + 1) + j)

    def stats():
        a("v_add_f32 v10, v10, v11")
        a("v_mov_b32 v11, v10")
        a("s_nop 1")
        a("v_permlane32_swap_b32 v10, v11")
        a("s_nop 1")
        a("v_add_f32 v10, v10, v11")
        a(f"v_mul_f32 v10, {f32hex(1.0/448)}, v10")
        a("v_sub_f32 v11, v8, v9")
        a("v_fma_f32 v10, -v11, v11, v10")
        a("v_max_f32 v10, 0, v10")
        a("v_cvt_pk_bf16_f32 v10, v10, v10")
        a("v_and_b32 v10, 0xffff0000, v10")
        a(f"v_add_f32 v10, {f32hex(1e-5)}, v10")
        a("v_cvt_pk_bf16_f32 v10, v10, v10")
        a("v_and_b32 v10, 0xffff0000, v10")
        a("v_sqrt_f32 v10, v10")
        a("s_nop 0")
        a("v_cvt_pk_bf16_f32 v10, v10, v10")
        a("v_and_b32 v10, 0xffff0000, v10")
        a("v_rcp_f32 v14, v10")
        a("s_nop 0")

    def sidejob_finish():
        a("s_waitcnt vmcnt(0)")
        for j in range(4):
            a(f"v_lshl_or_b32 v{SJ+j}, v{SJ+4+j}, 16, v{SJ+j}")
        for j in range(4):
            a(f"v_lshl_or_b32 v{SJ+4+j}, v{SJ+8+2*j+1}, 16, v{SJ+8+2*j}")
        a("s_and_b32 s70, s68, 3")
        a("s_lshl_b32 s70, s70, 6")
        a("v_add_u32 v2, s70, v1")
        a("v_lshlrev_b32 v3, 13, v2")
        a("s_lshl_b32 s70, s69, 4")
        a(f"s_add_u32 s70, s70, {OFF_WT}")
        a("v_cmp_gt_u32 vcc, 225, v2")
        a("s_and_saveexec_b64 s[78:79], vcc")
        a(f"buffer_store_dwordx4 v[{SJ}:{SJ+3}], v3, s[36:39], s70 offen")
        a("s_mov_b64 exec, s[78:79]")
        a("s_cmp_ge_u32 s72, 112")
        a("s_cbranch_scc1 K1_end")
        a("s_cmp_ge_u32 s73, 14")
        a("s_cbranch_scc1 K1_end")
        a("s_mul_i32 s70, s73, 112")
        a("s_add_u32 s70, s70, s72")
        a("s_lshl_b32 s70, s70, 10")
        a(f"s_add_u32 s70, s70, {OFF_WDF}")
        a("v_lshlrev_b32 v3, 4, v1")
        a(f"buffer_store_dwordx4 v[{SJ+4}:{SJ+7}], v3, s[36:39], s70 offen")
        a("s_branch K1_end")

    mainloop(False)
    stats()
    a("s_nop 7")
    a(f"s_mov_b32 s61, {f32hex(C1)}")
    a(f"s_mov_b32 s62, {f32hex(C2)}")
    a(f"s_mul_i32 s63, s55, {NSTEP}")
    a("s_lshl_b32 s64, s53, 2")
    a("s_add_u32 s63, s63, s64")
    a("s_lshl_b32 s63, s63, 10")
    a(f"s_add_u32 s63, s63, {OFF_HZ}")
    a("v_lshlrev_b32 v3, 4, v1")
    a("v_mov_b32 v15, s61")
    for jj in range(2):
        for r in range(0, 16, 2):
            outs = []
            for rr in (r, r + 1):
                g = ACC + 16 * jj + rr
                u = ACC + 16 * (2 + jj) + rr
                tmp = 12 + (rr & 1)
                a(f"v_mul_f32 v{g}, v{g}, v14")
                a(f"v_mul_f32 v{u}, v{u}, v14")
                a(f"v_mul_f32 v{tmp}, v{g}, v{g}")
                a(f"v_fma_f32 v{tmp}, v{tmp}, s62, v15")
                a(f"v_mul_f32 v{tmp}, v{tmp}, v{g}")
                a(f"v_exp_f32 v{tmp}, v{tmp}")
                a("s_nop 0")
                a(f"v_add_f32 v{tmp}, 1.0, v{tmp}")
                a(f"v_rcp_f32 v{tmp}, v{tmp}")
                a("s_nop 0")
                a(f"v_mul_f32 v{tmp}, v{tmp}, v{g}")
                a(f"v_mul_f32 v{tmp}, v{tmp}, v{u}")
            a(f"v_cvt_pk_bf16_f32 v{BF + jj*8 + r//2}, v12, v13")
        for t in range(2):
            a(f"buffer_store_dwordx4 v[{BF+jj*8+4*t}:{BF+jj*8+4*t+3}], v3, s[36:39], s63 offen offset:{(2*jj+t)*1024}")
    sidejob_finish()

    a.label("K1_dft")
    mainloop(True)
    stats()
    a("s_lshl_b32 s61, s52, 7")
    a(f"s_add_u32 s61, s61, {LDS_INV}")
    a("v_and_b32 v2, 31, v1")
    a("v_lshlrev_b32 v2, 2, v2")
    a("v_add_u32 v2, s61, v2")
    a("ds_write_b32 v2, v14")
    a("v_lshrrev_b32 v2, 5, v1")
    a("v_lshlrev_b32 v2, 4, v2")
    a("v_add_u32 v2, s61, v2")
    a("s_waitcnt lgkmcnt(0)")
    for g in range(4):
        a(f"ds_read_b128 v[{BF+4*g}:{BF+4*g+3}], v2 offset:{32*g}")
    a("v_and_b32 v3, 31, v1")
    a("v_lshlrev_b32 v3, 12, v3")
    a("v_lshrrev_b32 v2, 5, v1")
    a("v_lshl_add_u32 v3, v2, 4, v3")
    a("s_sub_u32 s61, s53, 28")
    a("s_lshl_b32 s61, s61, 19")
    a("s_lshl_b32 s62, s55, 6")
    a("s_add_u32 s61, s61, s62")
    a(f"s_add_u32 s61, s61, {OFF_UF}")
    a("s_waitcnt lgkmcnt(0)")
    for j4 in range(4):
        for r in range(16):
            a(f"v_mul_f32 v{ACC+16*j4+r}, v{ACC+16*j4+r}, v{BF+r}")
        for r in range(0, 16, 2):
            a(f"v_cvt_pk_bf16_f32 v{XF + j4*8 + r//2}, v{ACC+16*j4+r}, v{ACC+16*j4+r+1}")
        for t in range(2):
            a(f"buffer_store_dwordx4 v[{XF+j4*8+4*t}:{XF+j4*8+4*t+3}], v3, s[36:39], s61 offen offset:{32*t}")
        a(f"s_add_u32 s61, s61, {32*4096}")
    sidejob_finish()
    a.label("K1_end")
    a("s_endpgm")
```

```python
from common import *

FR = 16
A1 = 48
A2 = 112
WV = 176
TMP = 208
K2_ARCH = 224
K2_LDS = 32768

def cfrag32(kind, t):
    return 4 * (kind * 2 + t)
def cfrag64(kind, tau, beta, t):
    return 24 + 4 * (kind * 8 + tau * 4 + beta * 2 + t)

def gen_ctab(a):
    a.raw(".p2align 8")
    a.raw(".type ctab,@object")
    a.label("ctab")
    fn = [np.cos, np.sin, lambda x: -np.sin(x)]
    def emit(vals):
        for i in range(0, 512, 16):
            dw = [(vals[i + 2 * j] | (vals[i + 2 * j + 1] << 16)) for j in range(8)]
            a.raw(".long " + ",".join("0x%x" % d for d in dw))
    for kind in range(3):
        for t in range(2):
            vals = []
            for l in range(64):
                h = l >> 5
                for i in range(8):
                    sl = 8 * (2 * t + (i >> 2)) + 4 * h + (i & 3)
                    vals.append(bf16(fn[kind](2 * np.pi * (((l & 31) * sl) % 32) / 32)))
            emit(vals)
    for kind in range(3):
        for tau in range(2):
            for beta in range(2):
                for t in range(2):
                    vals = []
                    for l in range(64):
                        h = l >> 5
                        for i in range(8):
                            sl = 32 * beta + 8 * (2 * t + (i >> 2)) + 4 * h + (i & 3)
                            vals.append(bf16(fn[kind](2 * np.pi * ((((l & 31) + 32 * tau) * sl) % 64) / 64)))
                    emit(vals)

def fr(ri, beta, t):
    r = FR + ((ri * 2 + beta) * 2 + t) * 4
    return f"v[{r}:{r+3}]"
def acc(base, ri, beta):
    r = base + (ri * 2 + beta) * 16
    return f"v[{r}:{r+15}]"
def ca(idx):
    return f"a[{idx}:{idx+3}]"

def gen_k2(a):
    khead(a, "k2_kernel")
    a("s_cmp_ge_u32 s2, 58")
    a("s_cbranch_scc1 K2_end")
    a("s_load_dwordx2 s[4:5], s[0:1], 72")
    a("s_getpc_b64 s[6:7]")
    a("s_add_u32 s6, s6, ctab@rel32@lo+4")
    a("s_addc_u32 s7, s7, ctab@rel32@hi+12")
    a("v_lshrrev_b32 v1, 6, v0")
    a("s_nop 0")
    a("v_readfirstlane_b32 s20, v1")
    a("v_and_b32 v1, 63, v0")
    a("s_lshl_b32 s21, s2, 2")
    a("s_add_u32 s21, s21, s20")
    a("s_cmp_lt_u32 s21, 225")
    a("s_cselect_b32 s22, -1, 0")
    a("s_min_u32 s21, s21, 224")
    a("s_waitcnt lgkmcnt(0)")
    srd(a, 8, 4, WS_BYTES)
    srd(a, 12, 6, 30 * 1024)
    a("v_and_b32 v2, 31, v1")
    a("v_lshlrev_b32 v2, 6, v2")
    a("v_lshrrev_b32 v3, 5, v1")
    a("v_lshl_add_u32 v2, v3, 4, v2")
    a("s_lshl_b32 s23, s21, 13")
    a(f"s_add_u32 s23, s23, {OFF_UF}")
    a("s_add_u32 s24, s23, 4096")
    for ri in range(2):
        for beta in range(2):
            for t in range(2):
                a(f"buffer_load_dwordx4 {fr(ri,beta,t)}, v2, s[8:11], s{23+ri} offen offset:{beta*2048+t*32}")
    a("v_lshlrev_b32 v4, 4, v1")
    for f in range(6):
        a(f"s_movk_i32 s25, {f*1024}")
        a(f"buffer_load_dwordx4 a[{4*f}:{4*f+3}], v4, s[12:15], s25 offen")
    for f in range(6, 30):
        a(f"s_movk_i32 s25, {f*1024}")
        a(f"buffer_load_dwordx4 a[{4*f}:{4*f+3}], v4, s[12:15], s25 offen")
    a("s_lshl_b32 s26, s21, 13")
    a(f"s_add_u32 s26, s26, {OFF_WT}")
    for i in range(8):
        if i * 1024 < 4096:
            a(f"buffer_load_dwordx4 v[{WV+4*i}:{WV+4*i+3}], v4, s[8:11], s26 offen offset:{i*1024}")
        else:
            if i == 4:
                a("s_add_u32 s26, s26, 4096")
            a(f"buffer_load_dwordx4 v[{WV+4*i}:{WV+4*i+3}], v4, s[8:11], s26 offen offset:{(i-4)*1024}")
    a("v_and_b32 v5, 31, v1")
    a("v_cvt_f32_u32 v5, v5")
    a(f"v_add_f32 v7, {f32hex(32.0)}, v5")
    a(f"v_mul_f32 v5, {f32hex(1.0/2048)}, v5")
    a(f"v_mul_f32 v7, {f32hex(1.0/2048)}, v7")
    a("v_lshlrev_b32 v9, 2, v3")
    a("v_cvt_f32_u32 v9, v9")
    a("v_mul_f32 v6, v5, v9")
    a("v_mul_f32 v8, v7, v9")
    a("s_waitcnt vmcnt(32)")
    for beta in range(2):
        for t in range(2):
            z = t == 0
            a(f"v_mfma_f32_32x32x16_bf16 {acc(A1,0,beta)}, {fr(0,beta,t)}, {ca(cfrag32(0,t))}, {'0' if z else acc(A1,0,beta)}")
            a(f"v_mfma_f32_32x32x16_bf16 {acc(A1,1,beta)}, {fr(1,beta,t)}, {ca(cfrag32(0,t))}, {'0' if z else acc(A1,1,beta)}")
            a(f"v_mfma_f32_32x32x16_bf16 {acc(A1,0,beta)}, {fr(1,beta,t)}, {ca(cfrag32(1,t))}, {acc(A1,0,beta)}")
            a(f"v_mfma_f32_32x32x16_bf16 {acc(A1,1,beta)}, {fr(0,beta,t)}, {ca(cfrag32(2,t))}, {acc(A1,1,beta)}")
    a("s_nop 15")

    def twiddle(base, stage):
        for beta in range(2):
            for r in range(16):
                g, j = r >> 2, r & 3
                R = base + (0 * 2 + beta) * 16 + r
                I = base + (1 * 2 + beta) * 16 + r
                tr, tc, ts, t2 = TMP, TMP + 1, TMP + 2, TMP + 3
                if stage == 1:
                    K = 32 * beta + 8 * g + j
                    cf, hf = 5, 6
                else:
                    K = 8 * g + j
                    cf, hf = (5, 6) if beta == 0 else (7, 8)
                if K == 0:
                    a(f"v_mov_b32 v{tr}, v{hf}")
                else:
                    a(f"v_fmamk_f32 v{tr}, v{cf}, {f32hex(float(K))}, v{hf}")
                a(f"v_cos_f32 v{tc}, v{tr}")
                a(f"v_sin_f32 v{ts}, v{tr}")
                a("s_nop 0")
                if stage == 1:
                    a(f"v_mul_f32 v{t2}, v{R}, v{tc}")
                    a(f"v_mul_f32 v{tr}, v{I}, v{tc}")
                    a(f"v_fma_f32 v{tr}, -v{R}, v{ts}, v{tr}")
                    a(f"v_fma_f32 v{R}, v{I}, v{ts}, v{t2}")
                    a(f"v_mov_b32 v{I}, v{tr}")
                else:
                    a(f"v_mul_f32 v{t2}, v{R}, v{tc}")
                    a(f"v_mul_f32 v{tr}, v{I}, v{tc}")
                    a(f"v_fma_f32 v{tr}, v{R}, v{ts}, v{tr}")
                    a(f"v_fma_f32 v{R}, -v{I}, v{ts}, v{t2}")
                    a(f"v_mov_b32 v{I}, v{tr}")
        pack(base)

    def pack(base):
        for ri in range(2):
            for beta in range(2):
                for r in range(0, 16, 2):
                    t = r >> 3
                    d = FR + ((ri * 2 + beta) * 2 + t) * 4 + ((r & 7) >> 1)
                    sreg = base + (ri * 2 + beta) * 16 + r
                    a(f"v_cvt_pk_bf16_f32 v{d}, v{sreg}, v{sreg+1}")
        a("s_nop 1")

    twiddle(A1, 1)
    a("s_waitcnt vmcnt(8)")
    for dl in range(2):
        first = True
        for beta in range(2):
            for t in range(2):
                a(f"v_mfma_f32_32x32x16_bf16 {acc(A2,0,dl)}, {ca(cfrag64(0,dl,beta,t))}, {fr(0,beta,t)}, {'0' if first else acc(A2,0,dl)}")
                a(f"v_mfma_f32_32x32x16_bf16 {acc(A2,1,dl)}, {ca(cfrag64(0,dl,beta,t))}, {fr(1,beta,t)}, {'0' if first else acc(A2,1,dl)}")
                a(f"v_mfma_f32_32x32x16_bf16 {acc(A2,0,dl)}, {ca(cfrag64(1,dl,beta,t))}, {fr(1,beta,t)}, {acc(A2,0,dl)}")
                a(f"v_mfma_f32_32x32x16_bf16 {acc(A2,1,dl)}, {ca(cfrag64(2,dl,beta,t))}, {fr(0,beta,t)}, {acc(A2,1,dl)}")
                first = False
    a("s_nop 15")
    a("s_waitcnt vmcnt(0)")
    for dl in range(2):
        for r in range(16):
            R = A2 + dl * 16 + r
            I = A2 + (2 + dl) * 16 + r
            w = WV + dl * 16 + r
            a(f"v_lshlrev_b32 v{TMP}, 16, v{w}")
            a(f"v_and_b32 v{TMP+1}, 0xffff0000, v{w}")
            a(f"v_mul_f32 v{TMP+2}, v{R}, v{TMP}")
            a(f"v_mul_f32 v{TMP+3}, v{R}, v{TMP+1}")
            a(f"v_fma_f32 v{R}, -v{I}, v{TMP+1}, v{TMP+2}")
            a(f"v_fma_f32 v{I}, v{I}, v{TMP}, v{TMP+3}")
    pack(A2)
    for beta in range(2):
        first = True
        for dl in range(2):
            for t in range(2):
                a(f"v_mfma_f32_32x32x16_bf16 {acc(A1,0,beta)}, {fr(0,dl,t)}, {ca(cfrag64(0,beta,dl,t))}, {'0' if first else acc(A1,0,beta)}")
                a(f"v_mfma_f32_32x32x16_bf16 {acc(A1,1,beta)}, {fr(1,dl,t)}, {ca(cfrag64(0,beta,dl,t))}, {'0' if first else acc(A1,1,beta)}")
                a(f"v_mfma_f32_32x32x16_bf16 {acc(A1,0,beta)}, {fr(1,dl,t)}, {ca(cfrag64(2,beta,dl,t))}, {acc(A1,0,beta)}")
                a(f"v_mfma_f32_32x32x16_bf16 {acc(A1,1,beta)}, {fr(0,dl,t)}, {ca(cfrag64(1,beta,dl,t))}, {acc(A1,1,beta)}")
                first = False
    a("s_nop 15")
    twiddle(A1, 2)
    for beta in range(2):
        for t in range(2):
            z = t == 0
            a(f"v_mfma_f32_32x32x16_bf16 {acc(A2,0,beta)}, {fr(0,beta,t)}, {ca(cfrag32(0,t))}, {'0' if z else acc(A2,0,beta)}")
            a(f"v_mfma_f32_32x32x16_bf16 {acc(A2,1,beta)}, {fr(1,beta,t)}, {ca(cfrag32(0,t))}, {'0' if z else acc(A2,1,beta)}")
            a(f"v_mfma_f32_32x32x16_bf16 {acc(A2,0,beta)}, {fr(1,beta,t)}, {ca(cfrag32(2,t))}, {acc(A2,0,beta)}")
            a(f"v_mfma_f32_32x32x16_bf16 {acc(A2,1,beta)}, {fr(0,beta,t)}, {ca(cfrag32(1,t))}, {acc(A2,1,beta)}")
    a("s_cmp_eq_u32 s21, 0")
    a("s_cselect_b32 s27, 1, 0")
    a("s_cmp_eq_u32 s21, 224")
    a("s_cselect_b32 s27, 1, s27")
    a("s_cmp_eq_u32 s27, 1")
    a(f"s_mov_b32 s28, {f32hex(2.0/(448*2048))}")
    a(f"s_cselect_b32 s27, {f32hex(1.0/(448*2048))}, s28")
    a("v_and_b32 v2, 31, v1")
    a("v_lshlrev_b32 v2, 2, v2")
    a("v_lshl_add_u32 v2, v3, 9, v2")
    a("s_lshl_b32 s28, s20, 13")
    a("v_add_u32 v2, s28, v2")
    a("s_nop 7")
    for beta in range(2):
        for r in range(16):
            g, j = r >> 2, r & 3
            R = A2 + beta * 16 + r
            I = A2 + (2 + beta) * 16 + r
            a(f"v_mul_f32 v{R}, s27, v{R}")
            a(f"v_mul_f32 v{I}, s27, v{I}")
            a(f"v_cvt_pk_bf16_f32 v{R}, v{R}, v{I}")
            a(f"v_and_b32 v{R}, s22, v{R}")
            a(f"ds_write_b32 v2, v{R} offset:{(32*beta+8*g+j)*128}")
    a("s_waitcnt lgkmcnt(0)")
    a("s_barrier")
    a("v_lshlrev_b32 v2, 2, v0")
    a("v_lshrrev_b32 v4, 5, v0")
    a(f"s_mov_b32 s28, {NSTEP*1024}")
    a("v_mul_lo_u32 v4, v4, s28")
    a("v_and_b32 v5, 31, v0")
    a("v_lshl_add_u32 v4, v5, 4, v4")
    a("s_lshr_b32 s28, s2, 1")
    a("s_add_u32 s28, s28, 112")
    a("s_lshl_b32 s28, s28, 10")
    a("s_and_b32 s29, s2, 1")
    a("s_lshl_b32 s29, s29, 9")
    a("s_add_u32 s28, s28, s29")
    a(f"s_add_u32 s28, s28, {OFF_HZ}")
    for i in range(8):
        for q in range(4):
            a(f"ds_read_b32 v{FR+4*i+q}, v2 offset:{q*8192+i*1024}")
    for i in range(8):
        a(f"s_waitcnt lgkmcnt({28-4*i if 28-4*i <= 15 else 15})")
        a(f"buffer_store_dwordx4 v[{FR+4*i}:{FR+4*i+3}], v4, s[8:11], s28 offen")
        a(f"s_add_u32 s28, s28, {8*NSTEP*1024}")
    a.label("K2_end")
    a("s_endpgm")
```

```python
from common import *

NB = 10
ACC = 16
RING = 80
XR = 240
K3_LDS = 49152

def gen_k3(a, tabsym):
    khead(a, "k3_kernel")
    a("s_cmp_ge_u32 s2, 224")
    a("s_cbranch_scc1 K3_end")
    a("s_load_dwordx2 s[4:5], s[0:1], 0")
    a("s_load_dwordx2 s[6:7], s[0:1], 56")
    a("s_load_dwordx2 s[8:9], s[0:1], 72")
    a("s_getpc_b64 s[10:11]")
    a(f"s_add_u32 s10, s10, {tabsym}@rel32@lo+4")
    a(f"s_addc_u32 s11, s11, {tabsym}@rel32@hi+12")
    a("v_lshrrev_b32 v1, 6, v0")
    a("s_nop 0")
    a("v_readfirstlane_b32 s30, v1")
    a("v_and_b32 v1, 63, v0")
    a("s_and_b32 s31, s2, 7")
    a("s_lshr_b32 s32, s2, 3")
    a("s_mul_i32 s33, s32, 37")
    a("s_lshr_b32 s33, s33, 8")
    a("s_mul_i32 s34, s33, 7")
    a("s_sub_u32 s34, s32, s34")
    a("s_lshl_b32 s31, s31, 2")
    a("s_add_u32 s33, s33, s31")
    a("s_waitcnt lgkmcnt(0)")
    srd(a, 12, 4, S * D * 2)
    srd(a, 16, 6, S * D * 2)
    srd(a, 20, 8, WS_BYTES)
    srd(a, 24, 10, 448 * 1024)
    a("v_lshlrev_b32 v2, 4, v1")
    a(f"s_mul_i32 s35, s34, {2*112*1024}")
    a(f"s_add_u32 s35, s35, {OFF_WDF}")
    a("v_add_u32 v3, s35, v2")
    a(f"v_add_u32 v4, {112*1024}, v3")
    a(f"s_mul_i32 s35, s33, {2*NSTEP*1024}")
    a(f"s_add_u32 s35, s35, {OFF_HZ}")
    a("v_add_u32 v5, s35, v2")
    a(f"v_add_u32 v6, {NSTEP*1024}, v5")
    a("v_and_b32 v7, 31, v1")
    a("s_lshl_b32 s35, s34, 6")
    a("v_add_u32 v7, s35, v7")
    a("v_lshlrev_b32 v7, 10, v7")
    a("v_lshrrev_b32 v9, 5, v1")
    a("v_lshl_add_u32 v7, v9, 4, v7")
    a(f"v_add_u32 v8, {32*1024}, v7")
    a("v_and_b32 v10, 31, v1")
    a("v_lshlrev_b32 v10, 6, v10")
    a("s_lshl_b32 s35, s33, 1")
    a("s_and_b32 s36, s30, 1")
    a("s_add_u32 s35, s35, s36")
    a("v_add_u32 v10, s35, v10")
    a("s_movk_i32 s35, 896")
    a("v_mul_lo_u32 v10, v10, s35")
    a("s_lshl_b32 s35, s34, 7")
    a("s_lshr_b32 s36, s30, 1")
    a("s_lshl_b32 s36, s36, 6")
    a("s_add_u32 s35, s35, s36")
    a("v_add_u32 v10, s35, v10")
    a("v_lshl_add_u32 v10, v9, 3, v10")
    for g in range(4):
        a(f"buffer_load_dwordx2 v[{XR+2*g}:{XR+2*g+1}], v10, s[12:15], 0 offen offset:{16*g}")
    for w in range(1, 4):
        a(f"s_cmp_eq_u32 s30, {w}")
        a(f"s_cbranch_scc1 K3_w{w}")
    steps = [('G', T) for T in range(112)] + [('Z', T) for T in range(NT3)]
    bounds = [0, 35, 70, 105, 141]
    for w in range(4):
        if w:
            a.label(f"K3_w{w}")
        my = steps[bounds[w]:bounds[w + 1]]
        n = len(my)
        def issue(i):
            kind, T = my[i]
            r = RING + 16 * (i % NB)
            if kind == 'G':
                a(f"s_mov_b32 s40, {T*1024}")
                a(f"buffer_load_dwordx4 v[{r}:{r+3}], v3, s[20:23], s40 offen")
                a(f"buffer_load_dwordx4 v[{r+4}:{r+7}], v4, s[20:23], s40 offen")
                a(f"buffer_load_dwordx4 v[{r+8}:{r+11}], v5, s[20:23], s40 offen")
                a(f"buffer_load_dwordx4 v[{r+12}:{r+15}], v6, s[20:23], s40 offen")
            else:
                a(f"s_mov_b32 s40, {(112+T)*1024}")
                a(f"buffer_load_dwordx4 v[{r}:{r+3}], v7, s[24:27], 0 offen offset:{32*T}")
                a(f"buffer_load_dwordx4 v[{r+4}:{r+7}], v8, s[24:27], 0 offen offset:{32*T}")
                a(f"buffer_load_dwordx4 v[{r+8}:{r+11}], v5, s[20:23], s40 offen")
                a(f"buffer_load_dwordx4 v[{r+12}:{r+15}], v6, s[20:23], s40 offen")
        for i in range(NB):
            issue(i)
        for i in range(n):
            ahead = min(i + NB, n) - i - 1
            a(f"s_waitcnt vmcnt({4*ahead})")
            r = RING + 16 * (i % NB)
            for ds in range(2):
                for bs in range(2):
                    tau = ds * 2 + bs
                    ac = f"v[{ACC+16*tau}:{ACC+16*tau+15}]"
                    a(f"v_mfma_f32_32x32x16_bf16 {ac}, v[{r+4*ds}:{r+4*ds+3}], v[{r+8+4*bs}:{r+8+4*bs+3}], {'0' if i == 0 else ac}")
            if i + NB < n:
                issue(i + NB)
        a("s_nop 15")
        for tau in range(4):
            if tau == w:
                continue
            slot = (w - tau - 1) % 4
            for g in range(4):
                a(f"ds_write_b128 v2, v[{ACC+16*tau+4*g}:{ACC+16*tau+4*g+3}] offset:{tau*12288+slot*4096+g*1024}")
        a("s_waitcnt lgkmcnt(0)")
        a("s_barrier")
        for slot in range(3):
            for g in range(4):
                a(f"ds_read_b128 v[{RING+16*slot+4*g}:{RING+16*slot+4*g+3}], v2 offset:{w*12288+slot*4096+g*1024}")
        own = ACC + 16 * w
        for slot in range(3):
            a(f"s_waitcnt lgkmcnt({8-4*slot})")
            for r in range(16):
                a(f"v_add_f32 v{own+r}, v{own+r}, v{RING+16*slot+r}")
        for g in range(4):
            for p in range(2):
                x = XR + 2 * g + p
                a(f"v_lshlrev_b32 v11, 16, v{x}")
                a(f"v_and_b32 v12, 0xffff0000, v{x}")
                a(f"v_add_f32 v11, v11, v{own+4*g+2*p}")
                a(f"v_add_f32 v12, v12, v{own+4*g+2*p+1}")
                a(f"v_cvt_pk_bf16_f32 v{x}, v11, v12")
            a(f"buffer_store_dwordx2 v[{XR+2*g}:{XR+2*g+1}], v10, s[16:19], 0 offen offset:{16*g}")
        if w < 3:
            a("s_branch K3_end")
    a.label("K3_end")
    a("s_endpgm")
```

```python
import sys
from common import *
import k1, k2, k3

def gen_t1(a):
    a.raw(".p2align 8")
    for j in range(448):
        a.raw(f".set tc{j}, 0x{bf16(np.cos(2*np.pi*j/448)):04x}")
    a.raw(""".altmacro
.macro t1emit i
.short tc\\i
.endm
.macro t1row d
.set t1idx, 0
.rept 225
t1emit %t1idx
t1emit %((t1idx + 112) % 448)
.set t1idx, (t1idx + \\d) % 448
.endr
.rept 62
.short 0
.endr
.endm
.type t1tab,@object
t1tab:
.set t1dd, 0
.rept 448
t1row %t1dd
.set t1dd, t1dd+1
.endr
.noaltmacro""")

def main(out):
    hdr = open("parallel_sum__spectral_gfnet__glu_gated_geglu__prompt.s.ref").read().split("; Override")[0]
    a = Asm()
    a.raw(hdr.rstrip())
    a.raw(f"; @launch kernel=k1_kernel grid=(256,1,1) block=(512,1,1) lds={k1.K1_LDS}")
    a.raw(f"; @launch kernel=k2_kernel grid=(58,1,1) block=(256,1,1) lds={k2.K2_LDS}")
    a.raw(f"; @launch kernel=k3_kernel grid=(224,1,1) block=(256,1,1) lds={k3.K3_LDS}")
    a.raw('.amdgcn_target "amdgcn-amd-amdhsa--gfx950"')
    a.raw(".text")
    k1.gen_k1(a, "t1tab")
    k2.gen_k2(a)
    k3.gen_k3(a, "t1tab")
    a.raw('.section .rodata,"a"')
    a.raw(".p2align 6")
    a.raw(kd("k1_kernel", 240, 96))
    a.raw(kd("k2_kernel", k2.K2_ARCH + 120, 48, k2.K2_ARCH))
    a.raw(kd("k3_kernel", 248, 48))
    gen_t1(a)
    k2.gen_ctab(a)
    open(out, "w").write(a.text())

if __name__ == "__main__":
    main(sys.argv[1] if len(sys.argv) > 1 else "parallel_sum__spectral_gfnet__glu_gated_geglu__prompt.s")
```

```python
import numpy as np

S, D, F, NK = 2048, 448, 1792, 225
NT3 = 29
NSTEP = 112 + NT3
OFF_HZ = 0
SZ_HZ = 64 * NSTEP * 1024
OFF_WDF = OFF_HZ + SZ_HZ
SZ_WDF = 14 * 112 * 1024
OFF_WT = OFF_WDF + SZ_WDF
SZ_WT = 225 * 8192
OFF_UF = OFF_WT + SZ_WT
SZ_UF = 512 * 64 * 64
WS_BYTES = 268435456

def bf16(x):
    u = int(np.float32(x).view(np.uint32))
    return ((u + 0x7FFF + ((u >> 16) & 1)) >> 16) & 0xFFFF

def f32hex(x):
    return "0x%08x" % int(np.float32(x).view(np.uint32))

class Asm:
    def __init__(self):
        self.l = []
    def __call__(self, s):
        self.l.append("    " + s)
    def label(self, s):
        self.l.append(s + ":")
    def raw(self, s):
        self.l.append(s)
    def c(self, s):
        self.l.append("    ; " + s)
    def text(self):
        return "\n".join(self.l) + "\n"

def srd(a, sd, ptr_lo, nbytes):
    a(f"s_mov_b32 s{sd}, s{ptr_lo}")
    a(f"s_and_b32 s{sd+1}, s{ptr_lo+1}, 0xffff")
    a(f"s_mov_b32 s{sd+2}, {nbytes}")
    a(f"s_mov_b32 s{sd+3}, 0x00020000")

def kd(name, vgpr, sgpr, accum=None):
    if accum is None:
        accum = (vgpr + 3) // 4 * 4
    return f""".amdhsa_kernel {name}
  .amdhsa_next_free_vgpr {vgpr}
  .amdhsa_next_free_sgpr {sgpr}
  .amdhsa_accum_offset {accum}
  .amdhsa_group_segment_fixed_size 0
  .amdhsa_kernarg_size 80
  .amdhsa_user_sgpr_count 2
  .amdhsa_user_sgpr_kernarg_segment_ptr 1
  .amdhsa_system_sgpr_workgroup_id_x 1
.end_amdhsa_kernel
"""

def khead(a, name):
    a.raw(f".globl {name}")
    a.raw(".p2align 8")
    a.raw(f".type {name},@function")
    a.label(name)

STAMP = False
def stamp(a, i):
    if globals()['STAMP']:
        a("s_memtime s[80:81]")
        a("s_waitcnt lgkmcnt(0)")
        a(f"s_mov_b32 s{84+i}, s80")

def stamp_flush(a, n, wave_sreg):
    if globals()['STAMP']:
        a("s_load_dwordx2 s[80:81], s[0:1], 72")
        a("s_waitcnt lgkmcnt(0)")
        a("s_and_b32 s81, s81, 0xffff")
        a("s_mov_b32 s82, 0x10000000")
        a("s_mov_b32 s83, 0x00020000")
        a("s_lshl_b32 s79, s2, 3")
        a(f"s_add_u32 s79, s79, s{wave_sreg}")
        a("s_lshl_b32 s79, s79, 6")
        a(f"s_add_u32 s79, s79, {OFF_DBG}")
        a("v_mov_b32 v250, 0")
        for i in range(n):
            a(f"v_mov_b32 v251, s{84+i}")
            a(f"buffer_store_dword v251, v250, s[80:83], s79 offen offset:{4*i}")
OFF_DBG = 64 << 20
OFF_XNF = OFF_UF + SZ_UF
SZ_XNF = 64 * 28 * 1024
```

```python
from common import *
import common

def wave_reduce(a, v, sdst):
    a("s_nop 1")
    for sh in (1, 2, 4, 8):
        a(f"v_add_f32_dpp v{v}, v{v}, v{v} row_shr:{sh} row_mask:0xf bank_mask:0xf bound_ctrl:0")
        a("s_nop 1")
    a(f"v_add_f32_dpp v{v}, v{v}, v{v} row_bcast:15 row_mask:0xa bank_mask:0xf")
    a("s_nop 1")
    a(f"v_add_f32_dpp v{v}, v{v}, v{v} row_bcast:31 row_mask:0xc bank_mask:0xf")
    a("s_nop 1")
    a(f"v_readlane_b32 s{sdst}, v{v}, 63")

SJ = 24

def gen_k0(a):
    khead(a, "k0_kernel")
    a("s_cmp_ge_u32 s2, 256")
    a("s_cbranch_scc1 K0_end")
    a("s_load_dwordx16 s[4:19], s[0:1], 0")
    a("s_load_dwordx4 s[20:23], s[0:1], 64")
    a("v_lshrrev_b32 v1, 6, v0")
    a("s_nop 0")
    a("v_readfirstlane_b32 s52, v1")
    a("v_and_b32 v1, 63, v0")
    a("s_and_b32 s53, s2, 3")
    a("s_lshl_b32 s53, s53, 3")
    a("s_add_u32 s53, s53, s52")
    a("s_lshr_b32 s54, s2, 2")
    a("s_lshl_b32 s55, s53, 6")
    a("s_add_u32 s55, s55, s54")
    a("s_mul_i32 s55, s55, 896")
    a("s_mov_b32 s60, 0x3f803f80")
    a("v_mov_b32 v4, 0")
    a("v_mov_b32 v5, 0")
    a("v_mov_b32 v6, 0")
    a("v_mov_b32 v7, 0")
    a("v_lshlrev_b32 v2, 4, v1")
    a("s_waitcnt lgkmcnt(0)")
    srd(a, 24, 4, S * D * 2)
    srd(a, 36, 22, WS_BYTES)
    srd(a, 40, 6, S * NK * 2)
    srd(a, 44, 8, S * NK * 2)
    srd(a, 48, 16, F * D * 2)
    a("s_mov_b32 exec_hi, 0x00ffffff")
    a("buffer_load_dwordx4 v[4:7], v2, s[24:27], s55 offen")
    a("s_mov_b32 exec_hi, -1")
    a("s_lshl_b32 s68, s2, 3")
    a("s_add_u32 s68, s68, s52")
    a("s_lshr_b32 s69, s68, 2")
    a("s_and_b32 s70, s68, 3")
    a("s_lshl_b32 s70, s70, 6")
    a("v_add_u32 v14, s70, v1")
    a("s_and_b32 s70, s69, 31")
    a("s_lshr_b32 s71, s69, 5")
    a("s_lshl_b32 s71, s71, 7")
    a("s_add_u32 s70, s70, s71")
    a("s_mul_i32 s70, s70, 450")
    a("v_lshlrev_b32 v15, 1, v14")
    a("v_add_u32 v15, s70, v15")
    for j in range(4):
        a(f"s_mov_b32 s71, {j*32*450}")
        a(f"buffer_load_ushort v{SJ+j}, v15, s[40:43], s71 offen")
        a(f"buffer_load_ushort v{SJ+4+j}, v15, s[44:47], s71 offen")
    a("s_lshr_b32 s72, s68, 4")
    a("s_and_b32 s73, s68, 15")
    a("s_min_u32 s74, s72, 111")
    a("s_min_u32 s75, s73, 13")
    a("s_lshl_b32 s76, s74, 4")
    a("v_lshrrev_b32 v12, 5, v1")
    a("v_lshlrev_b32 v12, 2, v12")
    a("v_add_u32 v12, s76, v12")
    a("s_movk_i32 s64, 896")
    a("v_mul_lo_u32 v12, v12, s64")
    a("v_and_b32 v13, 31, v1")
    a("s_lshl_b32 s76, s75, 5")
    a("v_add_u32 v13, s76, v13")
    a("v_lshl_add_u32 v12, v13, 1, v12")
    for i in range(8):
        off = (8 * (i >> 2) + (i & 3)) * 896
        if off < 4096:
            a(f"buffer_load_ushort v{SJ+8+i}, v12, s[48:51], 0 offen offset:{off}")
        else:
            a(f"s_movk_i32 s71, {off}")
            a(f"buffer_load_ushort v{SJ+8+i}, v12, s[48:51], s71 offen")
    a("s_waitcnt vmcnt(16)")
    a("v_dot2_f32_bf16 v8, v4, s60, 0")
    a("v_dot2_f32_bf16 v9, v5, s60, 0")
    a("v_dot2_f32_bf16 v8, v6, s60, v8")
    a("v_dot2_f32_bf16 v9, v7, s60, v9")
    a("s_nop 3")
    a("v_add_f32 v8, v8, v9")
    wave_reduce(a, 8, 61)
    a("s_nop 1")
    a("v_mov_b32 v8, s61")
    a(f"v_mul_f32 v8, {f32hex(1.0/448)}, v8")
    a("v_cvt_pk_bf16_f32 v9, v8, v8")
    a("v_and_b32 v9, 0xffff0000, v9")
    for i in range(4):
        a(f"v_lshlrev_b32 v{16+2*i}, 16, v{4+i}")
        a(f"v_and_b32 v{17+2*i}, 0xffff0000, v{4+i}")
    for i in range(8):
        a(f"v_sub_f32 v{16+i}, v{16+i}, v9")
    a("v_mul_f32 v10, v16, v16")
    for i in range(1, 8):
        a(f"v_fmac_f32 v10, v{16+i}, v{16+i}")
    a("v_cmp_gt_u32 vcc, 56, v1")
    a("s_nop 1")
    a("v_cndmask_b32 v10, 0, v10, vcc")
    wave_reduce(a, 10, 61)
    a("s_nop 1")
    a("v_mov_b32 v10, s61")
    a(f"v_mul_f32 v10, {f32hex(1.0/448)}, v10")
    a("v_sub_f32 v11, v8, v9")
    a("v_fma_f32 v10, -v11, v11, v10")
    a("v_max_f32 v10, 0, v10")
    a("v_cvt_pk_bf16_f32 v10, v10, v10")
    a("v_and_b32 v10, 0xffff0000, v10")
    a(f"v_add_f32 v10, {f32hex(1e-5)}, v10")
    a("v_cvt_pk_bf16_f32 v10, v10, v10")
    a("v_and_b32 v10, 0xffff0000, v10")
    a("v_sqrt_f32 v10, v10")
    a("s_nop 0")
    a("v_cvt_pk_bf16_f32 v10, v10, v10")
    a("v_and_b32 v10, 0xffff0000, v10")
    a("v_rcp_f32 v11, v10")
    for i in range(4):
        a(f"v_cvt_pk_bf16_f32 v{4+i}, v{16+2*i}, v{17+2*i}")
    for i in range(4):
        a(f"v_lshlrev_b32 v{16+2*i}, 16, v{4+i}")
        a(f"v_and_b32 v{17+2*i}, 0xffff0000, v{4+i}")
    for i in range(8):
        a(f"v_mul_f32 v12, v{16+i}, v11")
        a(f"v_fma_f32 v13, -v12, v10, v{16+i}")
        a(f"v_fma_f32 v{16+i}, v13, v11, v12")
    for i in range(4):
        a(f"v_cvt_pk_bf16_f32 v{4+i}, v{16+2*i}, v{17+2*i}")
    a("v_lshrrev_b32 v12, 1, v1")
    a("v_lshlrev_b32 v12, 10, v12")
    a("v_and_b32 v13, 1, v1")
    a("v_lshl_add_u32 v12, v13, 9, v12")
    a(f"s_mul_i32 s61, s54, {28*1024}")
    a("s_lshl_b32 s62, s53, 4")
    a("s_add_u32 s61, s61, s62")
    a(f"s_add_u32 s61, s61, {OFF_XNF}")
    a("s_mov_b32 exec_hi, 0x00ffffff")
    a("buffer_store_dwordx4 v[4:7], v12, s[36:39], s61 offen")
    a("s_mov_b32 exec_hi, -1")
    a("s_waitcnt vmcnt(1)")
    for j in range(4):
        a(f"v_lshl_or_b32 v{SJ+j}, v{SJ+4+j}, 16, v{SJ+j}")
    for j in range(4):
        a(f"v_lshl_or_b32 v{SJ+4+j}, v{SJ+8+2*j+1}, 16, v{SJ+8+2*j}")
    a("v_lshlrev_b32 v3, 13, v14")
    a("s_lshl_b32 s70, s69, 4")
    a(f"s_add_u32 s70, s70, {OFF_WT}")
    a("v_cmp_gt_u32 vcc, 225, v14")
    a("s_and_saveexec_b64 s[78:79], vcc")
    a(f"buffer_store_dwordx4 v[{SJ}:{SJ+3}], v3, s[36:39], s70 offen")
    a("s_mov_b64 exec, s[78:79]")
    a("s_cmp_ge_u32 s72, 112")
    a("s_cbranch_scc1 K0_end")
    a("s_cmp_ge_u32 s73, 14")
    a("s_cbranch_scc1 K0_end")
    a("s_mul_i32 s70, s73, 112")
    a("s_add_u32 s70, s70, s72")
    a("s_lshl_b32 s70, s70, 10")
    a(f"s_add_u32 s70, s70, {OFF_WDF}")
    a(f"buffer_store_dwordx4 v[{SJ+4}:{SJ+7}], v2, s[36:39], s70 offen")
    a.label("K0_end")
    a("s_endpgm")
```

```python
from common import *
import common

XF = 16
ACC = 128
BF = 192
K1_LDS = 114688

C1 = -2.0 * 0.7978845608028654 * 1.4426950408889634
C2 = C1 * 0.044715

def gen_k1(a, tabsym):
    khead(a, "k1_kernel")
    a("s_cmp_ge_u32 s2, 256")
    a("s_cbranch_scc1 K1_end")
    a("s_load_dwordx4 s[12:15], s[0:1], 32")
    a("s_load_dwordx2 s[22:23], s[0:1], 72")
    a("s_getpc_b64 s[58:59]")
    a(f"s_add_u32 s58, s58, {tabsym}@rel32@lo+4")
    a(f"s_addc_u32 s59, s59, {tabsym}@rel32@hi+12")
    a("v_lshrrev_b32 v1, 6, v0")
    a("s_nop 0")
    a("v_readfirstlane_b32 s52, v1")
    a("v_and_b32 v1, 63, v0")
    a("s_and_b32 s53, s2, 7")
    a("s_lshl_b32 s53, s53, 2")
    a("s_lshr_b32 s54, s2, 3")
    a("s_and_b32 s57, s54, 3")
    a("s_add_u32 s53, s53, s57")
    a("s_lshr_b32 s54, s54, 2")
    a("s_lshl_b32 s55, s54, 3")
    a("s_add_u32 s55, s55, s52")
    a("s_waitcnt lgkmcnt(0)")
    stamp(a, 0)
    srd(a, 36, 22, WS_BYTES)
    a("s_and_b32 s62, s52, 1")
    a("s_cmp_eq_u32 s62, 0")
    a("s_cselect_b32 s28, s12, s14")
    a("s_cselect_b32 s29, s13, s15")
    a("s_cmp_ge_u32 s53, 28")
    a("s_cselect_b32 s28, s58, s28")
    a("s_cselect_b32 s29, s59, s29")
    a("s_and_b32 s29, s29, 0xffff")
    a("s_cmp_ge_u32 s53, 28")
    a(f"s_mov_b32 s61, {D*F*2}")
    a(f"s_cselect_b32 s30, {448*1024}, s61")
    a("s_mov_b32 s31, 0x00020000")
    a("s_movk_i32 s61, 3584")
    a("s_cselect_b32 s56, 1024, s61")
    a("s_lshl_b32 s57, s53, 7")
    a("s_sub_u32 s61, s53, 28")
    a("s_lshl_b32 s61, s61, 8")
    a("s_lshl_b32 s63, s62, 7")
    a("s_add_u32 s61, s61, s63")
    a("s_cmp_ge_u32 s53, 28")
    a("s_cselect_b32 s57, s61, s57")
    a("v_lshlrev_b32 v2, 4, v1")
    a(f"s_mul_i32 s68, s55, {28*1024}")
    a(f"s_add_u32 s68, s68, {OFF_XNF}")
    a("v_lshrrev_b32 v3, 3, v1")
    a("v_and_b32 v4, 7, v1")
    a("v_bfe_u32 v5, v3, 1, 1")
    a("v_lshlrev_b32 v5, 2, v5")
    a("v_xor_b32 v4, v4, v5")
    a("s_lshr_b32 s63, s52, 1")
    a("s_lshl_b32 s64, s63, 3")
    a("v_add_u32 v3, s64, v3")
    a("v_mul_lo_u32 v3, v3, s56")
    a("v_lshl_add_u32 v3, v4, 4, v3")
    a("v_add_u32 v3, s57, v3")
    a("s_mul_i32 s65, s62, 57344")
    a("s_lshl_b32 s64, s63, 10")
    a("s_add_u32 s65, s65, s64")
    a("s_lshl_b32 s66, s56, 5")
    a("s_mov_b32 s67, 0")
    for c in range(7):
        for i in range(2):
            a("s_mov_b32 m0, s65")
            a("s_add_u32 s65, s65, 4096")
            a(f"buffer_load_dwordx4 v3, s[28:31], s67 offen lds")
            a("s_add_u32 s67, s67, s66")
        for t in range(4 * c, 4 * c + 4):
            a(f"buffer_load_dwordx4 v[{XF+4*t}:{XF+4*t+3}], v2, s[36:39], s68 offen offset:{(t&3)*1024}")
        a("s_add_u32 s68, s68, 4096")
    a("v_lshrrev_b32 v4, 5, v1")
    a("v_bfe_u32 v5, v1, 2, 2")
    a("v_lshl_add_u32 v4, v4, 3, v5")
    a("v_lshlrev_b32 v4, 7, v4")
    a("v_bfe_u32 v6, v1, 4, 1")
    a("v_bfe_u32 v7, v1, 1, 1")
    a("v_lshl_add_u32 v6, v6, 1, v7")
    a("v_lshrrev_b32 v7, 1, v5")
    a("v_lshlrev_b32 v7, 2, v7")
    a("v_xor_b32 v6, v6, v7")
    a("v_lshl_add_u32 v4, v6, 4, v4")
    a("v_and_b32 v7, 1, v1")
    a("v_lshl_add_u32 v4, v7, 3, v4")
    a("v_xor_b32 v5, 64, v4")
    a("v_add_u32 v6, 57344, v4")
    a("v_add_u32 v7, 57344, v5")

    def trreads(t):
        bs = BF + 16 * (t & 1)
        for j in range(4):
            for q in range(2):
                a(f"ds_read_b64_tr_b16 v[{bs+4*j+2*q}:{bs+4*j+2*q+1}], v{4+j} offset:{t*2048+q*512}")

    stamp(a, 1)
    a("s_waitcnt vmcnt(36)")
    a("s_barrier")
    stamp(a, 2)
    trreads(0)
    a("s_cmp_ge_u32 s53, 28")
    a("s_cbranch_scc1 K1_dft")

    def mainloop(dft):
        for t in range(28):
            if t + 1 < 28:
                if (t + 1) % 4 == 0:
                    c = (t + 1) // 4
                    a(f"s_waitcnt vmcnt({42 - 6*(c+1)})")
                    a("s_barrier")
                trreads(t + 1)
                a("s_waitcnt lgkmcnt(8)")
            else:
                a("s_waitcnt lgkmcnt(0)")
            bs = BF + 16 * (t & 1)
            xf = XF + 4 * t
            for j in range(4):
                acc = f"v[{ACC+16*j}:{ACC+16*j+15}]"
                cin = "0" if t == 0 else acc
                if dft:
                    a(f"v_mfma_f32_32x32x16_bf16 {acc}, v[{xf}:{xf+3}], v[{bs+4*j}:{bs+4*j+3}], {cin}")
                else:
                    a(f"v_mfma_f32_32x32x16_bf16 {acc}, v[{bs+4*j}:{bs+4*j+3}], v[{xf}:{xf+3}], {cin}")

    mainloop(False)
    stamp(a, 3)
    a(f"s_mov_b32 s61, {f32hex(C1)}")
    a(f"s_mov_b32 s62, {f32hex(C2)}")
    a(f"s_mul_i32 s63, s55, {NSTEP}")
    a("s_lshl_b32 s64, s53, 2")
    a("s_add_u32 s63, s63, s64")
    a("s_lshl_b32 s63, s63, 10")
    a(f"s_add_u32 s63, s63, {OFF_HZ}")
    a("v_mov_b32 v15, s61")
    a("s_nop 7")
    for jj in range(2):
        for r in range(0, 16, 4):
            tm = [8, 9, 10, 11]
            gs = [ACC + 16 * jj + r + e for e in range(4)]
            us = [ACC + 16 * (2 + jj) + r + e for e in range(4)]
            for e in range(4):
                a(f"v_mul_f32 v{tm[e]}, v{gs[e]}, v{gs[e]}")
            for e in range(4):
                a(f"v_fma_f32 v{tm[e]}, v{tm[e]}, s62, v15")
            for e in range(4):
                a(f"v_mul_f32 v{tm[e]}, v{tm[e]}, v{gs[e]}")
            for e in range(4):
                a(f"v_exp_f32 v{tm[e]}, v{tm[e]}")
            for e in range(4):
                a(f"v_mul_f32 v{gs[e]}, v{gs[e]}, v{us[e]}")
            for e in range(4):
                a(f"v_add_f32 v{tm[e]}, 1.0, v{tm[e]}")
            for e in range(4):
                a(f"v_rcp_f32 v{tm[e]}, v{tm[e]}")
            a("s_nop 0")
            for e in range(4):
                a(f"v_mul_f32 v{tm[e]}, v{tm[e]}, v{gs[e]}")
            a(f"v_cvt_pk_bf16_f32 v{BF + jj*8 + r//2}, v8, v9")
            a(f"v_cvt_pk_bf16_f32 v{BF + jj*8 + r//2 + 1}, v10, v11")
        for t in range(2):
            a(f"buffer_store_dwordx4 v[{BF+jj*8+4*t}:{BF+jj*8+4*t+3}], v2, s[36:39], s63 offen offset:{(2*jj+t)*1024}")
    a("s_branch K1_fin")

    a.label("K1_dft")
    mainloop(True)
    stamp(a, 3)
    a("v_and_b32 v3, 31, v1")
    a("v_lshlrev_b32 v3, 12, v3")
    a("v_lshrrev_b32 v2, 5, v1")
    a("v_lshl_add_u32 v3, v2, 4, v3")
    a("s_sub_u32 s61, s53, 28")
    a("s_lshl_b32 s61, s61, 19")
    a("s_lshl_b32 s62, s55, 6")
    a("s_add_u32 s61, s61, s62")
    a(f"s_add_u32 s61, s61, {OFF_UF}")
    a("s_nop 7")
    for j4 in range(4):
        for r in range(0, 16, 2):
            a(f"v_cvt_pk_bf16_f32 v{XF + j4*8 + r//2}, v{ACC+16*j4+r}, v{ACC+16*j4+r+1}")
        for t in range(2):
            a(f"buffer_store_dwordx4 v[{XF+j4*8+4*t}:{XF+j4*8+4*t+3}], v3, s[36:39], s61 offen offset:{32*t}")
        a(f"s_add_u32 s61, s61, {32*4096}")
    a.label("K1_fin")
    stamp(a, 4)
    stamp_flush(a, 5, 52)
    a.label("K1_end")
    a("s_endpgm")
```

```python
from common import *

NB = 10
ACC = 16
RING = 80
XR = 240
K3_LDS = 49152

def gen_k3(a, tabsym):
    khead(a, "k3_kernel")
    a("s_cmp_ge_u32 s2, 224")
    a("s_cbranch_scc1 K3_end")
    a("s_load_dwordx2 s[4:5], s[0:1], 0")
    a("s_load_dwordx2 s[6:7], s[0:1], 56")
    a("s_load_dwordx2 s[8:9], s[0:1], 72")
    a("s_getpc_b64 s[10:11]")
    a(f"s_add_u32 s10, s10, {tabsym}@rel32@lo+4")
    a(f"s_addc_u32 s11, s11, {tabsym}@rel32@hi+12")
    a("v_lshrrev_b32 v1, 6, v0")
    a("s_nop 0")
    a("v_readfirstlane_b32 s30, v1")
    a("v_and_b32 v1, 63, v0")
    a("s_and_b32 s31, s2, 7")
    a("s_lshr_b32 s32, s2, 3")
    a("s_mul_i32 s33, s32, 37")
    a("s_lshr_b32 s33, s33, 8")
    a("s_mul_i32 s34, s33, 7")
    a("s_sub_u32 s34, s32, s34")
    a("s_lshl_b32 s31, s31, 2")
    a("s_add_u32 s33, s33, s31")
    a("s_waitcnt lgkmcnt(0)")
    srd(a, 12, 4, S * D * 2)
    srd(a, 16, 6, S * D * 2)
    srd(a, 20, 8, WS_BYTES)
    srd(a, 24, 10, 14 * 29 * 1024)
    a("v_lshlrev_b32 v2, 4, v1")
    a(f"s_mul_i32 s35, s34, {2*112*1024}")
    a(f"s_add_u32 s35, s35, {OFF_WDF}")
    a("v_add_u32 v3, s35, v2")
    a(f"v_add_u32 v4, {112*1024}, v3")
    a(f"s_mul_i32 s35, s33, {2*NSTEP*1024}")
    a(f"s_add_u32 s35, s35, {OFF_HZ}")
    a("v_add_u32 v5, s35, v2")
    a(f"v_add_u32 v6, {NSTEP*1024}, v5")
    a("v_lshrrev_b32 v9, 5, v1")
    a(f"s_mul_i32 s35, s34, {2*29*1024}")
    a("v_add_u32 v7, s35, v2")
    a(f"v_add_u32 v8, {29*1024}, v7")
    a("v_and_b32 v10, 31, v1")
    a("v_lshlrev_b32 v10, 6, v10")
    a("s_lshl_b32 s35, s33, 1")
    a("s_and_b32 s36, s30, 1")
    a("s_add_u32 s35, s35, s36")
    a("v_add_u32 v10, s35, v10")
    a("s_movk_i32 s35, 896")
    a("v_mul_lo_u32 v10, v10, s35")
    a("s_lshl_b32 s35, s34, 7")
    a("s_lshr_b32 s36, s30, 1")
    a("s_lshl_b32 s36, s36, 6")
    a("s_add_u32 s35, s35, s36")
    a("v_add_u32 v10, s35, v10")
    a("v_lshl_add_u32 v10, v9, 3, v10")
    for g in range(4):
        a(f"buffer_load_dwordx2 v[{XR+2*g}:{XR+2*g+1}], v10, s[12:15], 0 offen offset:{16*g}")
    for w in range(1, 4):
        a(f"s_cmp_eq_u32 s30, {w}")
        a(f"s_cbranch_scc1 K3_w{w}")
    steps = [('G', T) for T in range(112)] + [('Z', T) for T in range(NT3)]
    bounds = [0, 35, 70, 105, 141]
    for w in range(4):
        if w:
            a.label(f"K3_w{w}")
        my = steps[bounds[w]:bounds[w + 1]]
        n = len(my)
        def issue(i):
            kind, T = my[i]
            r = RING + 16 * (i % NB)
            if kind == 'G':
                a(f"s_mov_b32 s40, {T*1024}")
                a(f"buffer_load_dwordx4 v[{r}:{r+3}], v3, s[20:23], s40 offen")
                a(f"buffer_load_dwordx4 v[{r+4}:{r+7}], v4, s[20:23], s40 offen")
                a(f"buffer_load_dwordx4 v[{r+8}:{r+11}], v5, s[20:23], s40 offen")
                a(f"buffer_load_dwordx4 v[{r+12}:{r+15}], v6, s[20:23], s40 offen")
            else:
                a(f"s_mov_b32 s40, {(112+T)*1024}")
                a(f"s_mov_b32 s41, {T*1024}")
                a(f"buffer_load_dwordx4 v[{r}:{r+3}], v7, s[24:27], s41 offen")
                a(f"buffer_load_dwordx4 v[{r+4}:{r+7}], v8, s[24:27], s41 offen")
                a(f"buffer_load_dwordx4 v[{r+8}:{r+11}], v5, s[20:23], s40 offen")
                a(f"buffer_load_dwordx4 v[{r+12}:{r+15}], v6, s[20:23], s40 offen")
        for i in range(NB):
            issue(i)
        for i in range(n):
            ahead = min(i + NB, n) - i - 1
            a(f"s_waitcnt vmcnt({4*ahead})")
            r = RING + 16 * (i % NB)
            for ds in range(2):
                for bs in range(2):
                    tau = ds * 2 + bs
                    ac = f"v[{ACC+16*tau}:{ACC+16*tau+15}]"
                    a(f"v_mfma_f32_32x32x16_bf16 {ac}, v[{r+4*ds}:{r+4*ds+3}], v[{r+8+4*bs}:{r+8+4*bs+3}], {'0' if i == 0 else ac}")
            if i + NB < n:
                issue(i + NB)
        a("s_nop 15")
        for tau in range(4):
            if tau == w:
                continue
            slot = (w - tau - 1) % 4
            for g in range(4):
                a(f"ds_write_b128 v2, v[{ACC+16*tau+4*g}:{ACC+16*tau+4*g+3}] offset:{tau*12288+slot*4096+g*1024}")
        a("s_waitcnt lgkmcnt(0)")
        a("s_barrier")
        for slot in range(3):
            for g in range(4):
                a(f"ds_read_b128 v[{RING+16*slot+4*g}:{RING+16*slot+4*g+3}], v2 offset:{w*12288+slot*4096+g*1024}")
        own = ACC + 16 * w
        for slot in range(3):
            a(f"s_waitcnt lgkmcnt({8-4*slot})")
            for r in range(16):
                a(f"v_add_f32 v{own+r}, v{own+r}, v{RING+16*slot+r}")
        for g in range(4):
            for p in range(2):
                x = XR + 2 * g + p
                a(f"v_lshlrev_b32 v11, 16, v{x}")
                a(f"v_and_b32 v12, 0xffff0000, v{x}")
                a(f"v_add_f32 v11, v11, v{own+4*g+2*p}")
                a(f"v_add_f32 v12, v12, v{own+4*g+2*p+1}")
                a(f"v_cvt_pk_bf16_f32 v{x}, v11, v12")
            a(f"buffer_store_dwordx2 v[{XR+2*g}:{XR+2*g+1}], v10, s[16:19], 0 offen offset:{16*g}")
        if w < 3:
            a("s_branch K3_end")
    a.label("K3_end")
    a("s_endpgm")
```

```python
import sys
from common import *
import k0, k1, k2, k3

def gen_t1(a):
    a.raw(".p2align 8")
    for j in range(448):
        a.raw(f".set tc{j}, 0x{bf16(np.cos(2*np.pi*j/448)):04x}")
    a.raw(""".altmacro
.macro t1emit i
.short tc\\i
.endm
.macro t1row d
.set t1idx, 0
.rept 225
t1emit %t1idx
t1emit %((t1idx + 112) % 448)
.set t1idx, (t1idx + \\d) % 448
.endr
.rept 62
.short 0
.endr
.endm
.type t1tab,@object
t1tab:
.set t1dd, 0
.rept 448
t1row %t1dd
.set t1dd, t1dd+1
.endr
.noaltmacro""")

def gen_gdf(a):
    a.raw(""".altmacro
.macro gdemit i
.short tc\\i
.endm
.p2align 8
.type gdftab,@object
gdftab:
.set gd_db, 0
.rept 14
.set gd_t3, 0
.rept 29
.set gd_l, 0
.rept 64
.set gd_d, 32*gd_db + (gd_l & 31)
.set gd_kk, 16*gd_t3 + 8*(gd_l >> 5)
.rept 8
.if gd_kk < 450
gdemit %((gd_d * (gd_kk >> 1) + 112 * (gd_kk & 1)) % 448)
.else
.short 0
.endif
.set gd_kk, gd_kk + 1
.endr
.set gd_l, gd_l + 1
.endr
.set gd_t3, gd_t3 + 1
.endr
.set gd_db, gd_db + 1
.endr
.noaltmacro""")

def main(out):
    import common
    if len(sys.argv) > 2 and sys.argv[2] == "stamp":
        common.STAMP = True
    hdr = open("parallel_sum__spectral_gfnet__glu_gated_geglu__prompt.s.ref").read().split("; Override")[0]
    a = Asm()
    a.raw(hdr.rstrip())
    a.raw(f"; @launch kernel=k0_kernel grid=(256,1,1) block=(512,1,1) lds=0")
    a.raw(f"; @launch kernel=k1_kernel grid=(256,1,1) block=(512,1,1) lds={k1.K1_LDS}")
    a.raw(f"; @launch kernel=k2_kernel grid=(58,1,1) block=(256,1,1) lds={k2.K2_LDS}")
    a.raw(f"; @launch kernel=k3_kernel grid=(224,1,1) block=(256,1,1) lds={k3.K3_LDS}")
    a.raw('.amdgcn_target "amdgcn-amd-amdhsa--gfx950"')
    a.raw(".text")
    k0.gen_k0(a)
    k1.gen_k1(a, "t1tab")
    k2.gen_k2(a)
    k3.gen_k3(a, "gdftab")
    a.raw('.section .rodata,"a"')
    a.raw(".p2align 6")
    a.raw(kd("k0_kernel", 40, 96))
    a.raw(kd("k1_kernel", 256 if common.STAMP else 224, 96))
    a.raw(kd("k2_kernel", k2.K2_ARCH + 120, 48, k2.K2_ARCH))
    a.raw(kd("k3_kernel", 248, 48))
    gen_t1(a)
    gen_gdf(a)
    k2.gen_ctab(a)
    open(out, "w").write(a.text())

if __name__ == "__main__":
    main(sys.argv[1] if len(sys.argv) > 1 else "parallel_sum__spectral_gfnet__glu_gated_geglu__prompt.s")
```

```python
import numpy as np

S, D, F, NK = 2048, 448, 1792, 225
NT3 = 29
NSTEP = 112 + NT3
OFF_HZ = 0
SZ_HZ = 64 * NSTEP * 1024
OFF_WDF = OFF_HZ + SZ_HZ
SZ_WDF = 14 * 112 * 1024
OFF_WT = OFF_WDF + SZ_WDF
SZ_WT = 225 * 8192
OFF_UF = OFF_WT + SZ_WT
SZ_UF = 512 * 64 * 64
WS_BYTES = 268435456

def bf16(x):
    u = int(np.float32(x).view(np.uint32))
    return ((u + 0x7FFF + ((u >> 16) & 1)) >> 16) & 0xFFFF

def f32hex(x):
    return "0x%08x" % int(np.float32(x).view(np.uint32))

class Asm:
    def __init__(self):
        self.l = []
    def __call__(self, s):
        self.l.append("    " + s)
    def label(self, s):
        self.l.append(s + ":")
    def raw(self, s):
        self.l.append(s)
    def c(self, s):
        self.l.append("    ; " + s)
    def text(self):
        return "\n".join(self.l) + "\n"

def srd(a, sd, ptr_lo, nbytes):
    a(f"s_mov_b32 s{sd}, s{ptr_lo}")
    a(f"s_and_b32 s{sd+1}, s{ptr_lo+1}, 0xffff")
    a(f"s_mov_b32 s{sd+2}, {nbytes}")
    a(f"s_mov_b32 s{sd+3}, 0x00020000")

def kd(name, vgpr, sgpr, accum=None):
    if accum is None:
        accum = (vgpr + 3) // 4 * 4
    return f""".amdhsa_kernel {name}
  .amdhsa_next_free_vgpr {vgpr}
  .amdhsa_next_free_sgpr {sgpr}
  .amdhsa_accum_offset {accum}
  .amdhsa_group_segment_fixed_size 0
  .amdhsa_kernarg_size 80
  .amdhsa_user_sgpr_count 2
  .amdhsa_user_sgpr_kernarg_segment_ptr 1
  .amdhsa_system_sgpr_workgroup_id_x 1
.end_amdhsa_kernel
"""

def khead(a, name):
    a.raw(f".globl {name}")
    a.raw(".p2align 8")
    a.raw(f".type {name},@function")
    a.label(name)

STAMP = False
CUR = None
def stamp(a, i):
    if globals()['STAMP'] and globals()['STAMP'] == globals()['CUR']:
        a("s_memtime s[80:81]")
        a("s_waitcnt lgkmcnt(0)")
        a(f"s_mov_b32 s{84+i}, s80")
        if i == 0:
            a("s_memrealtime s[80:81]")
            a("s_waitcnt lgkmcnt(0)")
            a(f"s_mov_b32 s94, s80")

def stamp_flush(a, n, wave_sreg):
    if globals()['STAMP'] and globals()['STAMP'] == globals()['CUR']:
        a("s_load_dwordx2 s[80:81], s[0:1], 72")
        a("s_waitcnt lgkmcnt(0)")
        a("s_and_b32 s81, s81, 0xffff")
        a("s_mov_b32 s82, 0x10000000")
        a("s_mov_b32 s83, 0x00020000")
        a("s_lshl_b32 s79, s2, 3")
        a(f"s_add_u32 s79, s79, s{wave_sreg}")
        a("s_lshl_b32 s79, s79, 6")
        a(f"s_add_u32 s79, s79, {OFF_DBG}")
        a("v_mov_b32 v250, 0")
        a("s_memrealtime s[76:77]")
        a("s_waitcnt lgkmcnt(0)")
        a("v_mov_b32 v251, s94")
        a("buffer_store_dword v251, v250, s[80:83], s79 offen offset:56")
        a("v_mov_b32 v251, s76")
        a("buffer_store_dword v251, v250, s[80:83], s79 offen offset:60")
        for i in range(n):
            a(f"v_mov_b32 v251, s{84+i}")
            a(f"buffer_store_dword v251, v250, s[80:83], s79 offen offset:{4*i}")
OFF_DBG = 64 << 20
OFF_XNF = OFF_UF + SZ_UF
SZ_XNF = 64 * 28 * 1024
```

```python
from common import *
import common

K0_LDS = 32 * 912
TB = 96
ACC0 = 208
AF = 224
SJ = 24
RAW = 40
FV = 56

def gen_k0(a, tabsym):
    common.CUR = "k0"
    khead(a, "k0_kernel")
    a("s_cmp_ge_u32 s2, 256")
    a("s_cbranch_scc1 K0_end")
    a("s_load_dwordx16 s[4:19], s[0:1], 0")
    a("s_load_dwordx4 s[20:23], s[0:1], 64")
    a("s_getpc_b64 s[58:59]")
    a(f"s_add_u32 s58, s58, {tabsym}@rel32@lo+4")
    a(f"s_addc_u32 s59, s59, {tabsym}@rel32@hi+12")
    a("v_lshrrev_b32 v1, 6, v0")
    a("s_nop 0")
    a("v_readfirstlane_b32 s52, v1")
    a("v_and_b32 v1, 63, v0")
    a("s_and_b32 s53, s2, 3")
    a("s_lshr_b32 s54, s2, 2")
    a("s_lshl_b32 s55, s52, 8")
    a("s_add_u32 s55, s55, s54")
    a("s_mul_i32 s55, s55, 896")
    a("s_mov_b32 s60, 0x3f803f80")
    for i in range(16):
        a(f"v_mov_b32 v{RAW+i}, 0")
    a("v_lshlrev_b32 v2, 4, v1")
    a("s_waitcnt lgkmcnt(0)")
    stamp(a, 0)
    srd(a, 24, 4, S * D * 2)
    srd(a, 36, 22, WS_BYTES)
    srd(a, 40, 6, S * NK * 2)
    srd(a, 44, 8, S * NK * 2)
    srd(a, 48, 16, F * D * 2)
    srd(a, 28, 58, 16 * 28 * 1024)
    a("s_mov_b32 exec_hi, 0x00ffffff")
    for r in range(4):
        a(f"buffer_load_dwordx4 v[{RAW+4*r}:{RAW+4*r+3}], v2, s[24:27], s55 offen")
        if r < 3:
            a(f"s_add_u32 s55, s55, {64*896}")
    a("s_mov_b32 exec_hi, -1")
    a("s_lshl_b32 s68, s2, 3")
    a("s_add_u32 s68, s68, s52")
    a("s_lshr_b32 s69, s68, 2")
    a("s_and_b32 s70, s68, 3")
    a("s_lshl_b32 s70, s70, 6")
    a("v_add_u32 v5, s70, v1")
    a("s_and_b32 s70, s69, 31")
    a("s_lshr_b32 s71, s69, 5")
    a("s_lshl_b32 s71, s71, 7")
    a("s_add_u32 s70, s70, s71")
    a("s_mul_i32 s70, s70, 450")
    a("v_lshlrev_b32 v6, 1, v5")
    a("v_add_u32 v6, s70, v6")
    for j in range(4):
        a(f"s_mov_b32 s71, {j*32*450}")
        a(f"buffer_load_ushort v{SJ+j}, v6, s[40:43], s71 offen")
        a(f"buffer_load_ushort v{SJ+4+j}, v6, s[44:47], s71 offen")
    a("s_lshr_b32 s72, s68, 4")
    a("s_and_b32 s73, s68, 15")
    a("s_min_u32 s74, s72, 111")
    a("s_min_u32 s75, s73, 13")
    a("s_lshl_b32 s76, s74, 4")
    a("v_lshrrev_b32 v7, 5, v1")
    a("v_lshlrev_b32 v12, 2, v7")
    a("v_add_u32 v12, s76, v12")
    a("s_movk_i32 s64, 896")
    a("v_mul_lo_u32 v12, v12, s64")
    a("v_and_b32 v13, 31, v1")
    a("s_lshl_b32 s76, s75, 5")
    a("v_add_u32 v13, s76, v13")
    a("v_lshl_add_u32 v12, v13, 1, v12")
    for i in range(8):
        off = (8 * (i >> 2) + (i & 3)) * 896
        if off < 4096:
            a(f"buffer_load_ushort v{SJ+8+i}, v12, s[48:51], 0 offen offset:{off}")
        else:
            a(f"s_movk_i32 s71, {off}")
            a(f"buffer_load_ushort v{SJ+8+i}, v12, s[48:51], s71 offen")
    a("s_cmp_ge_u32 s52, 4")
    a("s_cbranch_scc1 K0_nob")
    a("s_lshl_b32 s61, s53, 2")
    a("s_add_u32 s61, s61, s52")
    a(f"s_mul_i32 s61, s61, {28*1024}")
    for t in range(28):
        a(f"buffer_load_dwordx4 v[{TB+4*t}:{TB+4*t+3}], v2, s[28:31], s61 offen offset:{(t&3)*1024}")
        if t & 3 == 3:
            a("s_add_u32 s61, s61, 4096")
    a("s_waitcnt vmcnt(44)")
    a("s_branch K0_ln")
    a.label("K0_nob")
    a("s_waitcnt vmcnt(16)")
    a.label("K0_ln")
    stamp(a, 1)
    SUM = [8, 9, 10, 11]
    T2 = [12, 13, 14, 15]
    MB = [88, 89, 90, 91]
    VR = [92, 93, 94, 95]
    R4 = range(4)
    for r in R4:
        a(f"v_dot2_f32_bf16 v{SUM[r]}, v{RAW+4*r}, s60, 0")
        a(f"v_dot2_f32_bf16 v{T2[r]}, v{RAW+4*r+1}, s60, 0")
    for r in R4:
        a(f"v_dot2_f32_bf16 v{SUM[r]}, v{RAW+4*r+2}, s60, v{SUM[r]}")
        a(f"v_dot2_f32_bf16 v{T2[r]}, v{RAW+4*r+3}, s60, v{T2[r]}")
    a("s_nop 3")
    for r in R4:
        a(f"v_add_f32 v{SUM[r]}, v{SUM[r]}, v{T2[r]}")
    def reduce4(vs, sd):
        a("s_nop 1")
        for sh in (1, 2, 4, 8):
            for v in vs:
                a(f"v_add_f32_dpp v{v}, v{v}, v{v} row_shr:{sh} row_mask:0xf bank_mask:0xf bound_ctrl:0")
        for v in vs:
            a(f"v_add_f32_dpp v{v}, v{v}, v{v} row_bcast:15 row_mask:0xa bank_mask:0xf")
        for v in vs:
            a(f"v_add_f32_dpp v{v}, v{v}, v{v} row_bcast:31 row_mask:0xc bank_mask:0xf")
        for i, v in enumerate(vs):
            a(f"v_readlane_b32 s{sd+i}, v{v}, 63")
        a("s_nop 1")
    reduce4(SUM, 61)
    for r in R4:
        a(f"v_mov_b32 v{SUM[r]}, s{61+r}")
    for r in R4:
        a(f"v_mul_f32 v{SUM[r]}, {f32hex(1.0/448)}, v{SUM[r]}")
    for r in R4:
        a(f"v_cvt_pk_bf16_f32 v{MB[r]}, v{SUM[r]}, v{SUM[r]}")
    for r in R4:
        a(f"v_and_b32 v{MB[r]}, 0xffff0000, v{MB[r]}")
    for r in R4:
        for i in range(4):
            a(f"v_lshlrev_b32 v{FV+8*r+2*i}, 16, v{RAW+4*r+i}")
            a(f"v_and_b32 v{FV+8*r+2*i+1}, 0xffff0000, v{RAW+4*r+i}")
        for i in range(8):
            a(f"v_sub_f32 v{FV+8*r+i}, v{FV+8*r+i}, v{MB[r]}")
        a(f"v_mul_f32 v{VR[r]}, v{FV+8*r}, v{FV+8*r}")
        for i in range(1, 8):
            a(f"v_fmac_f32 v{VR[r]}, v{FV+8*r+i}, v{FV+8*r+i}")
    a("v_cmp_gt_u32 vcc, 56, v1")
    a("s_nop 1")
    for r in R4:
        a(f"v_cndmask_b32 v{VR[r]}, 0, v{VR[r]}, vcc")
    reduce4(VR, 61)
    for r in R4:
        a(f"v_mov_b32 v{VR[r]}, s{61+r}")
    def each(fmt):
        for r in R4:
            a(fmt.format(v=VR[r], m=SUM[r], mb=MB[r], t=T2[r]))
    each("v_mul_f32 v{v}, " + f32hex(1.0/448) + ", v{v}")
    each("v_sub_f32 v{t}, v{m}, v{mb}")
    each("v_fma_f32 v{v}, -v{t}, v{t}, v{v}")
    each("v_max_f32 v{v}, 0, v{v}")
    each("v_cvt_pk_bf16_f32 v{v}, v{v}, v{v}")
    each("v_and_b32 v{v}, 0xffff0000, v{v}")
    each("v_add_f32 v{v}, " + f32hex(1e-5) + ", v{v}")
    each("v_cvt_pk_bf16_f32 v{v}, v{v}, v{v}")
    each("v_and_b32 v{v}, 0xffff0000, v{v}")
    each("v_sqrt_f32 v{v}, v{v}")
    a("s_nop 0")
    each("v_cvt_pk_bf16_f32 v{v}, v{v}, v{v}")
    each("v_and_b32 v{v}, 0xffff0000, v{v}")
    each("v_rcp_f32 v{t}, v{v}")
    a(f"s_mul_i32 s61, s52, {4*912}")
    a("v_add_u32 v3, s61, v2")
    for r in R4:
        for i in range(4):
            a(f"v_cvt_pk_bf16_f32 v{RAW+4*r+i}, v{FV+8*r+2*i}, v{FV+8*r+2*i+1}")
        for i in range(4):
            a(f"v_lshlrev_b32 v{FV+8*r+2*i}, 16, v{RAW+4*r+i}")
            a(f"v_and_b32 v{FV+8*r+2*i+1}, 0xffff0000, v{RAW+4*r+i}")
        for i in range(0, 8, 2):
            a(f"v_mul_f32 v{SUM[r]}, v{FV+8*r+i}, v{T2[r]}")
            a(f"v_mul_f32 v{MB[r]}, v{FV+8*r+i+1}, v{T2[r]}")
            a(f"v_fma_f32 v{FV+8*r+i}, -v{SUM[r]}, v{VR[r]}, v{FV+8*r+i}")
            a(f"v_fma_f32 v{FV+8*r+i+1}, -v{MB[r]}, v{VR[r]}, v{FV+8*r+i+1}")
            a(f"v_fma_f32 v{FV+8*r+i}, v{FV+8*r+i}, v{T2[r]}, v{SUM[r]}")
            a(f"v_fma_f32 v{FV+8*r+i+1}, v{FV+8*r+i+1}, v{T2[r]}, v{MB[r]}")
        for i in range(4):
            a(f"v_cvt_pk_bf16_f32 v{RAW+4*r+i}, v{FV+8*r+2*i}, v{FV+8*r+2*i+1}")
        a("s_mov_b32 exec_hi, 0x00ffffff")
        a(f"ds_write_b128 v3, v[{RAW+4*r}:{RAW+4*r+3}] offset:{r*912}")
        a("s_mov_b32 exec_hi, -1")
    a("v_and_b32 v4, 31, v1")
    a("s_movk_i32 s61, 912")
    a("v_mul_lo_u32 v4, v4, s61")
    a("v_lshl_add_u32 v4, v7, 4, v4")
    a("s_waitcnt lgkmcnt(0)")
    a("s_barrier")
    stamp(a, 2)
    a("s_cmp_ge_u32 s52, 4")
    a("s_cbranch_scc1 K0_xn")
    for t in range(3):
        a(f"ds_read_b128 v[{AF+4*t}:{AF+4*t+3}], v4 offset:{32*t}")
    a("s_waitcnt vmcnt(0)")
    acc = f"v[{ACC0}:{ACC0+15}]"
    for t in range(28):
        if t + 3 < 28:
            a(f"ds_read_b128 v[{AF+4*((t+3)&3)}:{AF+4*((t+3)&3)+3}], v4 offset:{32*(t+3)}")
        a(f"s_waitcnt lgkmcnt({min(3, 27-t)})")
        a(f"v_mfma_f32_32x32x16_bf16 {acc}, v[{AF+4*(t&3)}:{AF+4*(t&3)+3}], v[{TB+4*t}:{TB+4*t+3}], {'0' if t == 0 else acc}")
    a("v_and_b32 v3, 31, v1")
    a("v_lshlrev_b32 v3, 12, v3")
    a("v_lshl_add_u32 v3, v7, 4, v3")
    a("s_lshl_b32 s61, s53, 2")
    a("s_add_u32 s61, s61, s52")
    a("s_lshl_b32 s61, s61, 17")
    a("s_lshl_b32 s62, s54, 6")
    a("s_add_u32 s61, s61, s62")
    a(f"s_add_u32 s61, s61, {OFF_UF}")
    a("s_nop 7")
    a("s_nop 3")
    for r in range(0, 16, 2):
        a(f"v_cvt_pk_bf16_f32 v{AF + r//2}, v{ACC0+r}, v{ACC0+r+1}")
    for t in range(2):
        a(f"buffer_store_dwordx4 v[{AF+4*t}:{AF+4*t+3}], v3, s[36:39], s61 offen offset:{32*t}")
    a("s_branch K0_side")
    a.label("K0_xn")
    a("s_mul_i32 s61, s53, 7")
    a("s_sub_u32 s62, s52, 4")
    a("s_add_u32 s61, s61, s62")
    a("s_lshl_b32 s63, s61, 5")
    a("v_add_u32 v4, s63, v4")
    a(f"ds_read_b128 v[{TB}:{TB+3}], v4")
    a(f"ds_read_b128 v[{TB+4}:{TB+7}], v4 offset:128")
    a(f"s_mul_i32 s63, s54, 28")
    a("s_add_u32 s63, s63, s61")
    a("s_lshl_b32 s63, s63, 10")
    a(f"s_add_u32 s63, s63, {OFF_XNF}")
    a("s_waitcnt vmcnt(0) lgkmcnt(0)")
    a(f"buffer_store_dwordx4 v[{TB}:{TB+3}], v2, s[36:39], s63 offen")
    a("s_cmp_ge_u32 s62, 3")
    a("s_cbranch_scc1 K0_side")
    a("s_add_u32 s63, s63, 4096")
    a(f"buffer_store_dwordx4 v[{TB+4}:{TB+7}], v2, s[36:39], s63 offen")
    a.label("K0_side")
    stamp(a, 3)
    a(f"v_lshl_or_b32 v{SJ+0}, v{SJ+1}, 16, v{SJ+0}")
    a(f"v_lshl_or_b32 v{SJ+1}, v{SJ+3}, 16, v{SJ+2}")
    a(f"v_lshl_or_b32 v{SJ+2}, v{SJ+5}, 16, v{SJ+4}")
    a(f"v_lshl_or_b32 v{SJ+3}, v{SJ+7}, 16, v{SJ+6}")
    for j in range(4):
        a(f"v_lshl_or_b32 v{SJ+4+j}, v{SJ+8+2*j+1}, 16, v{SJ+8+2*j}")
    a("v_lshlrev_b32 v3, 13, v5")
    a("s_lshl_b32 s70, s69, 4")
    a(f"s_add_u32 s70, s70, {OFF_WT}")
    a("v_cmp_gt_u32 vcc, 225, v5")
    a("s_and_saveexec_b64 s[78:79], vcc")
    a(f"buffer_store_dwordx4 v[{SJ}:{SJ+3}], v3, s[36:39], s70 offen")
    a("s_mov_b64 exec, s[78:79]")
    a("s_cmp_ge_u32 s72, 112")
    a("s_cbranch_scc1 K0_fin")
    a("s_cmp_ge_u32 s73, 14")
    a("s_cbranch_scc1 K0_fin")
    a("s_mul_i32 s70, s73, 112")
    a("s_add_u32 s70, s70, s72")
    a("s_lshl_b32 s70, s70, 10")
    a(f"s_add_u32 s70, s70, {OFF_WDF}")
    a(f"buffer_store_dwordx4 v[{SJ+4}:{SJ+7}], v2, s[36:39], s70 offen")
    a.label("K0_fin")
    stamp(a, 4)
    stamp_flush(a, 5, 52)
    a.label("K0_end")
    a("s_endpgm")
```

```python
from common import *
import common

XF = 16
ACC = 128
BF = 192
K1_LDS = 114688
PRE = 3

C1 = -2.0 * 0.7978845608028654 * 1.4426950408889634
C2 = C1 * 0.044715

FR = 16
NG = 48
AC = 64
CK = 128
WV = 208
TW = 240
TMP = 248
ZL = 32768

def cfrag32(kind, t):
    return CK + 4 * (kind * 2 + t)
def cfrag64(kind, tau, beta, t):
    return CK + 16 + 4 * (kind * 8 + tau * 4 + beta * 2 + t)

def gen_ctab(a):
    a.raw(".p2align 8")
    a.raw(".type ctab,@object")
    a.label("ctab")
    fn = [np.cos, np.sin]
    def emit(vals):
        for i in range(0, 512, 16):
            dw = [(vals[i + 2 * j] | (vals[i + 2 * j + 1] << 16)) for j in range(8)]
            a.raw(".long " + ",".join("0x%x" % d for d in dw))
    for kind in range(2):
        for t in range(2):
            vals = []
            for l in range(64):
                h = l >> 5
                for i in range(8):
                    sl = 8 * (2 * t + (i >> 2)) + 4 * h + (i & 3)
                    vals.append(bf16(fn[kind](2 * np.pi * (((l & 31) * sl) % 32) / 32)))
            emit(vals)
    for kind in range(2):
        for tau in range(2):
            for beta in range(2):
                for t in range(2):
                    vals = []
                    for l in range(64):
                        h = l >> 5
                        for i in range(8):
                            sl = 32 * beta + 8 * (2 * t + (i >> 2)) + 4 * h + (i & 3)
                            vals.append(bf16(fn[kind](2 * np.pi * ((((l & 31) + 32 * tau) * sl) % 64) / 64)))
                    emit(vals)
    for stage in range(2):
        for beta in range(2):
            for p in range(8):
                dws = []
                for l in range(64):
                    h = l >> 5; c = l & 31
                    cs = []; ss = []
                    for e in range(2):
                        r = 2 * p + e
                        g, j = r >> 2, r & 3
                        if stage == 0:
                            m = c * (32 * beta + 8 * g + 4 * h + j)
                            sg = 1.0
                        else:
                            m = (c + 32 * beta) * (8 * g + 4 * h + j)
                            sg = -1.0
                        th = 2 * np.pi * (m % 2048) / 2048
                        cs.append(np.cos(th)); ss.append(sg * np.sin(th))
                    dws += [f32hex(cs[0]), f32hex(cs[1]), f32hex(ss[0]), f32hex(ss[1])]
                for i in range(0, 256, 16):
                    a.raw(".long " + ",".join(dws[i:i + 16]))

def fr(ri, beta, t):
    r = FR + ((ri * 2 + beta) * 2 + t) * 4
    return f"v[{r}:{r+3}]"
def ng(beta, t):
    r = NG + (beta * 2 + t) * 4
    return f"v[{r}:{r+3}]"
def acc(ri, beta):
    r = AC + (ri * 2 + beta) * 16
    return f"v[{r}:{r+15}]"
def ca(idx):
    return f"v[{idx}:{idx+3}]"

def gen_fft(a):
    a("s_lshl_b32 s21, s2, 3")
    a("s_add_u32 s21, s21, s52")
    a("s_cmp_lt_u32 s21, 225")
    a("s_cselect_b32 s26, -1, 0")
    a("s_min_u32 s21, s21, 224")
    srd(a, 8, 22, WS_BYTES)
    srd(a, 12, 58, 52 * 1024)
    a("v_and_b32 v2, 31, v1")
    a("v_lshlrev_b32 v2, 6, v2")
    a("v_lshrrev_b32 v3, 5, v1")
    a("v_lshl_add_u32 v2, v3, 4, v2")
    a("v_lshlrev_b32 v4, 4, v1")
    a("s_lshl_b32 s27, s21, 13")
    a(f"s_add_u32 s27, s27, {OFF_UF}")
    a("s_add_u32 s28, s27, 4096")
    for ri in range(2):
        for beta in range(2):
            for t in range(2):
                a(f"buffer_load_dwordx4 {fr(ri,beta,t)}, v2, s[8:11], s{27+ri} offen offset:{beta*2048+t*32}")
    for f in range(4):
        a(f"buffer_load_dwordx4 {ca(CK+4*f)}, v4, s[12:15], 0 offen offset:{f*1024}")
    a("s_lshl_b32 s29, s52, 12")
    a(f"s_add_u32 s30, s29, {20*1024}")
    a("s_mov_b32 m0, s29")
    for i in range(4):
        a(f"buffer_load_dwordx4 v4, s[12:15], s30 offen offset:{i*1024} lds")
    for f in range(4, 20):
        if f % 4 == 0:
            a(f"s_movk_i32 s25, {f*1024}")
        a(f"buffer_load_dwordx4 {ca(CK+4*f)}, v4, s[12:15], s25 offen offset:{(f&3)*1024}")
    a("s_lshl_b32 s27, s21, 13")
    a(f"s_add_u32 s27, s27, {OFF_WT}")
    for i in range(8):
        if i == 4:
            a("s_add_u32 s27, s27, 4096")
        a(f"buffer_load_dwordx4 v[{WV+4*i}:{WV+4*i+3}], v4, s[8:11], s27 offen offset:{(i&3)*1024}")
    a("s_mov_b32 s31, 0x80008000")
    a("s_waitcnt vmcnt(28)")
    for i in range(16):
        a(f"v_xor_b32 v{NG+i}, s31, v{FR+i}")
    a("s_nop 1")
    for beta in range(2):
        for t in range(2):
            z = t == 0
            a(f"v_mfma_f32_32x32x16_bf16 {acc(0,beta)}, {fr(0,beta,t)}, {ca(cfrag32(0,t))}, {'0' if z else acc(0,beta)}")
            a(f"v_mfma_f32_32x32x16_bf16 {acc(1,beta)}, {fr(1,beta,t)}, {ca(cfrag32(0,t))}, {'0' if z else acc(1,beta)}")
            a(f"v_mfma_f32_32x32x16_bf16 {acc(0,beta)}, {fr(1,beta,t)}, {ca(cfrag32(1,t))}, {acc(0,beta)}")
            a(f"v_mfma_f32_32x32x16_bf16 {acc(1,beta)}, {ng(beta,t)}, {ca(cfrag32(1,t))}, {acc(1,beta)}")
    a("s_waitcnt vmcnt(24)")
    a("s_barrier")

    def fdst(ri, beta, r):
        return FR + ((ri * 2 + beta) * 2 + (r >> 3)) * 4 + ((r & 7) >> 1)
    def ndst(beta, r):
        return NG + (beta * 2 + (r >> 3)) * 4 + ((r & 7) >> 1)

    def twiddle(stage):
        negri = 0 if stage == 0 else 1
        seq = [(beta, p) for beta in range(2) for p in range(8)]
        def rd(i):
            beta, p = seq[i]
            a(f"ds_read_b128 v[{TW+4*(i&1)}:{TW+4*(i&1)+3}], v4 offset:{((stage*2+beta)*8+p)*1024}")
        rd(0)
        a("s_nop 7")
        for i, (beta, p) in enumerate(seq):
            if i + 1 < 16:
                rd(i + 1)
                a("s_waitcnt lgkmcnt(1)")
            else:
                a("s_waitcnt lgkmcnt(0)")
            r = 2 * p
            R = AC + beta * 16 + r
            I = AC + (2 + beta) * 16 + r
            c = TW + 4 * (i & 1); s = c + 2
            u = TMP + 4 * (i & 1); t = u + 2
            a(f"v_pk_mul_f32 v[{u}:{u+1}], v[{I}:{I+1}], v[{c}:{c+1}]")
            a(f"v_pk_mul_f32 v[{t}:{t+1}], v[{R}:{R+1}], v[{c}:{c+1}]")
            a(f"v_pk_fma_f32 v[{u}:{u+1}], v[{R}:{R+1}], v[{s}:{s+1}], v[{u}:{u+1}] neg_lo:[1,0,0] neg_hi:[1,0,0]")
            a(f"v_pk_fma_f32 v[{t}:{t+1}], v[{I}:{I+1}], v[{s}:{s+1}], v[{t}:{t+1}]")
            a(f"v_cvt_pk_bf16_f32 v{fdst(1,beta,r)}, v{u}, v{u+1}")
            a(f"v_cvt_pk_bf16_f32 v{fdst(0,beta,r)}, v{t}, v{t+1}")
            x = t if negri == 0 else u
            a(f"v_cvt_pk_bf16_f32 v{ndst(beta,r)}, -v{x}, -v{x+1}")
        a("s_nop 1")

    twiddle(0)
    a("s_waitcnt vmcnt(8)")
    for dl in range(2):
        first = True
        for beta in range(2):
            for t in range(2):
                a(f"v_mfma_f32_32x32x16_bf16 {acc(0,dl)}, {ca(cfrag64(0,dl,beta,t))}, {fr(0,beta,t)}, {'0' if first else acc(0,dl)}")
                a(f"v_mfma_f32_32x32x16_bf16 {acc(1,dl)}, {ca(cfrag64(0,dl,beta,t))}, {fr(1,beta,t)}, {'0' if first else acc(1,dl)}")
                a(f"v_mfma_f32_32x32x16_bf16 {acc(0,dl)}, {ca(cfrag64(1,dl,beta,t))}, {fr(1,beta,t)}, {acc(0,dl)}")
                a(f"v_mfma_f32_32x32x16_bf16 {acc(1,dl)}, {ca(cfrag64(1,dl,beta,t))}, {ng(beta,t)}, {acc(1,dl)}")
                first = False
    a("s_waitcnt vmcnt(0)")
    a("s_nop 15")
    for dl in range(2):
        for r in range(0, 16, 2):
            g, jp = r >> 2, (r & 3) >> 1
            R = AC + dl * 16 + r
            I = AC + (2 + dl) * 16 + r
            wr = WV + dl * 16 + 4 * g + jp
            wi = wr + 2
            o = 8 * ((r >> 1) & 1)
            c = TW + (o >> 1); s = None
            c = TW + 4 * ((r >> 1) & 1); s = c + 2
            u = TMP + 4 * ((r >> 1) & 1); t = u + 2
            a(f"v_lshlrev_b32 v{c}, 16, v{wr}")
            a(f"v_and_b32 v{c+1}, 0xffff0000, v{wr}")
            a(f"v_lshlrev_b32 v{s}, 16, v{wi}")
            a(f"v_and_b32 v{s+1}, 0xffff0000, v{wi}")
            a(f"v_pk_mul_f32 v[{u}:{u+1}], v[{I}:{I+1}], v[{c}:{c+1}]")
            a(f"v_pk_mul_f32 v[{t}:{t+1}], v[{R}:{R+1}], v[{c}:{c+1}]")
            a(f"v_pk_fma_f32 v[{u}:{u+1}], v[{R}:{R+1}], v[{s}:{s+1}], v[{u}:{u+1}]")
            a(f"v_pk_fma_f32 v[{t}:{t+1}], v[{I}:{I+1}], v[{s}:{s+1}], v[{t}:{t+1}] neg_lo:[1,0,0] neg_hi:[1,0,0]")
            a(f"v_cvt_pk_bf16_f32 v{fdst(1,dl,r)}, v{u}, v{u+1}")
            a(f"v_cvt_pk_bf16_f32 v{fdst(0,dl,r)}, v{t}, v{t+1}")
            a(f"v_cvt_pk_bf16_f32 v{ndst(dl,r)}, -v{u}, -v{u+1}")
    a("s_nop 1")
    for beta in range(2):
        first = True
        for dl in range(2):
            for t in range(2):
                a(f"v_mfma_f32_32x32x16_bf16 {acc(0,beta)}, {fr(0,dl,t)}, {ca(cfrag64(0,beta,dl,t))}, {'0' if first else acc(0,beta)}")
                a(f"v_mfma_f32_32x32x16_bf16 {acc(1,beta)}, {fr(1,dl,t)}, {ca(cfrag64(0,beta,dl,t))}, {'0' if first else acc(1,beta)}")
                a(f"v_mfma_f32_32x32x16_bf16 {acc(0,beta)}, {ng(dl,t)}, {ca(cfrag64(1,beta,dl,t))}, {acc(0,beta)}")
                a(f"v_mfma_f32_32x32x16_bf16 {acc(1,beta)}, {fr(0,dl,t)}, {ca(cfrag64(1,beta,dl,t))}, {acc(1,beta)}")
                first = False
    a("s_nop 7")
    twiddle(1)
    for beta in range(2):
        for t in range(2):
            z = t == 0
            a(f"v_mfma_f32_32x32x16_bf16 {acc(0,beta)}, {fr(0,beta,t)}, {ca(cfrag32(0,t))}, {'0' if z else acc(0,beta)}")
            a(f"v_mfma_f32_32x32x16_bf16 {acc(1,beta)}, {fr(1,beta,t)}, {ca(cfrag32(0,t))}, {'0' if z else acc(1,beta)}")
            a(f"v_mfma_f32_32x32x16_bf16 {acc(0,beta)}, {ng(beta,t)}, {ca(cfrag32(1,t))}, {acc(0,beta)}")
            a(f"v_mfma_f32_32x32x16_bf16 {acc(1,beta)}, {fr(0,beta,t)}, {ca(cfrag32(1,t))}, {acc(1,beta)}")
    a("s_cmp_eq_u32 s21, 0")
    a("s_cselect_b32 s27, 1, 0")
    a("s_cmp_eq_u32 s21, 224")
    a("s_cselect_b32 s27, 1, s27")
    a("s_cmp_eq_u32 s27, 1")
    a(f"s_mov_b32 s28, {f32hex(2.0/(448*2048))}")
    a(f"s_cselect_b32 s27, {f32hex(1.0/(448*2048))}, s28")
    a("s_and_b32 s27, s27, s26")
    a("v_and_b32 v2, 31, v1")
    a("v_lshlrev_b32 v2, 2, v2")
    a("v_lshl_add_u32 v2, v3, 9, v2")
    a("s_lshl_b32 s28, s52, 13")
    a(f"s_add_u32 s28, s28, {ZL}")
    a("v_add_u32 v2, s28, v2")
    a("s_nop 7")
    for beta in range(2):
        for r in range(16):
            g, j = r >> 2, r & 3
            R = AC + beta * 16 + r
            I = AC + (2 + beta) * 16 + r
            a(f"v_mul_f32 v{R}, s27, v{R}")
            a(f"v_mul_f32 v{I}, s27, v{I}")
            a(f"v_cvt_pk_bf16_f32 v{R}, v{R}, v{I}")
            a(f"ds_write_b32 v2, v{R} offset:{(32*beta+8*g+j)*128}")
    a("v_and_b32 v2, 31, v1")
    a("v_lshlrev_b32 v2, 2, v2")
    a("v_lshl_add_u32 v2, v3, 15, v2")
    a("s_lshl_b32 s28, s52, 7")
    a(f"s_add_u32 s28, s28, {ZL}")
    a("v_add_u32 v2, s28, v2")
    a(f"s_mul_i32 s28, s52, {NSTEP}")
    a("s_add_u32 s28, s28, s2")
    a("s_add_u32 s28, s28, 112")
    a("s_lshl_b32 s28, s28, 10")
    a(f"s_add_u32 s28, s28, {OFF_HZ}")
    a("s_waitcnt lgkmcnt(0)")
    a("s_barrier")
    for i in range(8):
        for q in range(4):
            a(f"ds_read_b32 v{FR+4*i+q}, v2 offset:{q*8192+i*1024}")
    for i in range(8):
        a(f"s_waitcnt lgkmcnt({min(28-4*i, 15)})")
        a(f"buffer_store_dwordx4 v[{FR+4*i}:{FR+4*i+3}], v4, s[8:11], s28 offen")
        a(f"s_add_u32 s28, s28, {8*NSTEP*1024}")

def gen_k1(a):
    common.CUR = "k1"
    khead(a, "k1_kernel")
    a("s_cmp_ge_u32 s2, 256")
    a("s_cbranch_scc1 K1_end")
    a("s_load_dwordx4 s[12:15], s[0:1], 32")
    a("s_load_dwordx2 s[22:23], s[0:1], 72")
    a("s_getpc_b64 s[58:59]")
    a(f"s_add_u32 s58, s58, ctab@rel32@lo+4")
    a(f"s_addc_u32 s59, s59, ctab@rel32@hi+12")
    a("v_lshrrev_b32 v1, 6, v0")
    a("s_nop 0")
    a("v_readfirstlane_b32 s52, v1")
    a("v_and_b32 v1, 63, v0")
    a("s_cmp_ge_u32 s2, 32")
    a("s_cbranch_scc1 K1_gemm")
    a("s_cmp_ge_u32 s2, 29")
    a("s_cbranch_scc1 K1_end")
    a("s_waitcnt lgkmcnt(0)")
    stamp(a, 0)
    gen_fft(a)
    stamp(a, 1); stamp(a, 2); stamp(a, 3)
    a("s_branch K1_fin")
    a.label("K1_gemm")
    a("s_sub_u32 s57, s2, 32")
    a("s_lshr_b32 s54, s57, 3")
    a("s_and_b32 s57, s57, 7")
    a("s_lshr_b32 s53, s57, 1")
    a("s_mul_i32 s53, s53, 7")
    a("s_lshr_b32 s61, s54, 2")
    a("s_add_u32 s53, s53, s61")
    a("s_and_b32 s54, s54, 3")
    a("s_and_b32 s57, s57, 1")
    a("s_lshl_b32 s57, s57, 2")
    a("s_add_u32 s54, s54, s57")
    a("s_lshl_b32 s55, s54, 3")
    a("s_add_u32 s55, s55, s52")
    a("s_waitcnt lgkmcnt(0)")
    stamp(a, 0)
    srd(a, 36, 22, WS_BYTES)
    a("s_and_b32 s62, s52, 1")
    a("s_cmp_eq_u32 s62, 0")
    a("s_cselect_b32 s28, s12, s14")
    a("s_cselect_b32 s29, s13, s15")
    a("s_and_b32 s29, s29, 0xffff")
    a(f"s_mov_b32 s30, {D*F*2}")
    a("s_mov_b32 s31, 0x00020000")
    a("s_lshl_b32 s57, s53, 7")
    a("v_lshlrev_b32 v2, 4, v1")
    a(f"s_mul_i32 s68, s55, {28*1024}")
    a(f"s_add_u32 s68, s68, {OFF_XNF}")
    a("v_lshrrev_b32 v3, 3, v1")
    a("v_and_b32 v4, 7, v1")
    a("v_bfe_u32 v5, v3, 1, 1")
    a("v_lshlrev_b32 v5, 2, v5")
    a("v_xor_b32 v4, v4, v5")
    a("s_lshr_b32 s63, s52, 1")
    a("s_lshl_b32 s64, s63, 3")
    a("v_add_u32 v3, s64, v3")
    a("s_movk_i32 s56, 3584")
    a("v_mul_lo_u32 v3, v3, s56")
    a("v_lshl_add_u32 v3, v4, 4, v3")
    a("v_add_u32 v3, s57, v3")
    a("s_mul_i32 s65, s62, 57344")
    a("s_lshl_b32 s64, s63, 10")
    a("s_add_u32 s65, s65, s64")
    a("s_mov_b32 s67, 0")
    def chunk(c):
        for i in range(2):
            a("s_mov_b32 m0, s65")
            a("s_add_u32 s65, s65, 4096")
            a(f"buffer_load_dwordx4 v3, s[28:31], s67 offen lds")
            a(f"s_add_u32 s67, s67, {3584*32}")
        for t in range(4 * c, 4 * c + 4):
            a(f"buffer_load_dwordx4 v[{XF+4*t}:{XF+4*t+3}], v2, s[36:39], s68 offen offset:{(t&3)*1024}")
        a("s_add_u32 s68, s68, 4096")
    for c in range(PRE):
        chunk(c)
    a("v_lshrrev_b32 v4, 5, v1")
    a("v_bfe_u32 v5, v1, 2, 2")
    a("v_lshl_add_u32 v4, v4, 3, v5")
    a("v_lshlrev_b32 v4, 7, v4")
    a("v_bfe_u32 v6, v1, 4, 1")
    a("v_bfe_u32 v7, v1, 1, 1")
    a("v_lshl_add_u32 v6, v6, 1, v7")
    a("v_lshrrev_b32 v7, 1, v5")
    a("v_lshlrev_b32 v7, 2, v7")
    a("v_xor_b32 v6, v6, v7")
    a("v_lshl_add_u32 v4, v6, 4, v4")
    a("v_and_b32 v7, 1, v1")
    a("v_lshl_add_u32 v4, v7, 3, v4")
    a("v_xor_b32 v5, 64, v4")
    a("v_add_u32 v6, 57344, v4")
    a("v_add_u32 v7, 57344, v5")

    def trreads(t):
        bs = BF + 16 * (t & 1)
        for j in range(4):
            for q in range(2):
                a(f"ds_read_b64_tr_b16 v[{bs+4*j+2*q}:{bs+4*j+2*q+1}], v{4+j} offset:{t*2048+q*512}")

    stamp(a, 1)
    a(f"s_waitcnt vmcnt({6*(PRE-1)})")
    a("s_barrier")
    stamp(a, 2)
    trreads(0)
    for t in range(28):
        if t + 1 < 28:
            if (t + 1) % 4 == 0:
                c = (t + 1) // 4
                issued = min(7, c - 1 + PRE)
                a(f"s_waitcnt vmcnt({6*(issued-c-1)})")
                a("s_barrier")
                trreads(t + 1)
                if issued < 7:
                    chunk(issued)
            else:
                trreads(t + 1)
            a("s_waitcnt lgkmcnt(8)")
        else:
            a("s_waitcnt lgkmcnt(0)")
        bs = BF + 16 * (t & 1)
        xf = XF + 4 * t
        for j in range(4):
            ac = f"v[{ACC+16*j}:{ACC+16*j+15}]"
            cin = "0" if t == 0 else ac
            a(f"v_mfma_f32_32x32x16_bf16 {ac}, v[{bs+4*j}:{bs+4*j+3}], v[{xf}:{xf+3}], {cin}")
    stamp(a, 3)
    a(f"s_mov_b32 s61, {f32hex(C1)}")
    a(f"s_mov_b32 s62, {f32hex(C2)}")
    a(f"s_mul_i32 s63, s55, {NSTEP}")
    a("s_lshl_b32 s64, s53, 2")
    a("s_add_u32 s63, s63, s64")
    a("s_lshl_b32 s63, s63, 10")
    a(f"s_add_u32 s63, s63, {OFF_HZ}")
    a("v_mov_b32 v15, s61")
    a("s_nop 7")
    for jj in range(2):
        for r in range(0, 16, 4):
            tm = [8, 9, 10, 11]
            gs = [ACC + 16 * jj + r + e for e in range(4)]
            us = [ACC + 16 * (2 + jj) + r + e for e in range(4)]
            for e in range(4):
                a(f"v_mul_f32 v{tm[e]}, v{gs[e]}, v{gs[e]}")
            for e in range(4):
                a(f"v_fma_f32 v{tm[e]}, v{tm[e]}, s62, v15")
            for e in range(4):
                a(f"v_mul_f32 v{tm[e]}, v{tm[e]}, v{gs[e]}")
            for e in range(4):
                a(f"v_exp_f32 v{tm[e]}, v{tm[e]}")
            for e in range(4):
                a(f"v_mul_f32 v{gs[e]}, v{gs[e]}, v{us[e]}")
            for e in range(4):
                a(f"v_add_f32 v{tm[e]}, 1.0, v{tm[e]}")
            for e in range(4):
                a(f"v_rcp_f32 v{tm[e]}, v{tm[e]}")
            a("s_nop 0")
            for e in range(4):
                a(f"v_mul_f32 v{tm[e]}, v{tm[e]}, v{gs[e]}")
            a(f"v_cvt_pk_bf16_f32 v{BF + jj*8 + r//2}, v8, v9")
            a(f"v_cvt_pk_bf16_f32 v{BF + jj*8 + r//2 + 1}, v10, v11")
        for t in range(2):
            a(f"buffer_store_dwordx4 v[{BF+jj*8+4*t}:{BF+jj*8+4*t+3}], v2, s[36:39], s63 offen offset:{(2*jj+t)*1024}")
    a.label("K1_fin")
    stamp(a, 4)
    stamp_flush(a, 5, 52)
    a.label("K1_end")
    a("s_endpgm")
```

```python
import sys
from common import *
import k0, k1, k3

def gen_t1(a):
    a.raw(".p2align 8")
    for j in range(448):
        a.raw(f".set tc{j}, 0x{bf16(np.cos(2*np.pi*j/448)):04x}")
    a.raw(""".altmacro
.macro t1emit i
.short tc\\i
.endm
.p2align 8
.type t1tab,@object
t1tab:
.set t1_ct, 0
.rept 16
.set t1_t, 0
.rept 28
.set t1_l, 0
.rept 64
.set t1_n, 32*t1_ct + (t1_l & 31)
.set t1_d, 16*t1_t + 8*(t1_l >> 5)
.rept 8
.if t1_n < 450
t1emit %((t1_d * (t1_n >> 1) + 112 * (t1_n & 1)) % 448)
.else
.short 0
.endif
.set t1_d, t1_d + 1
.endr
.set t1_l, t1_l + 1
.endr
.set t1_t, t1_t + 1
.endr
.set t1_ct, t1_ct + 1
.endr
.noaltmacro""")

def gen_gdf(a):
    a.raw(""".altmacro
.macro gdemit i
.short tc\\i
.endm
.p2align 8
.type gdftab,@object
gdftab:
.set gd_db, 0
.rept 14
.set gd_t3, 0
.rept 29
.set gd_l, 0
.rept 64
.set gd_d, 32*gd_db + (gd_l & 31)
.set gd_kk, 16*gd_t3 + 8*(gd_l >> 5)
.rept 8
.if gd_kk < 450
gdemit %((gd_d * (gd_kk >> 1) + 112 * (gd_kk & 1)) % 448)
.else
.short 0
.endif
.set gd_kk, gd_kk + 1
.endr
.set gd_l, gd_l + 1
.endr
.set gd_t3, gd_t3 + 1
.endr
.set gd_db, gd_db + 1
.endr
.noaltmacro""")

def main(out):
    import common
    if len(sys.argv) > 2:
        common.STAMP = sys.argv[2]
    hdr = open("parallel_sum__spectral_gfnet__glu_gated_geglu__prompt.s.ref").read().split("; Override")[0]
    a = Asm()
    a.raw(hdr.rstrip())
    a.raw(f"; @launch kernel=k0_kernel grid=(256,1,1) block=(512,1,1) lds={k0.K0_LDS}")
    a.raw(f"; @launch kernel=k1_kernel grid=(256,1,1) block=(512,1,1) lds={k1.K1_LDS}")
    a.raw(f"; @launch kernel=k3_kernel grid=(224,1,1) block=(256,1,1) lds={k3.K3_LDS}")
    a.raw('.amdgcn_target "amdgcn-amd-amdhsa--gfx950"')
    a.raw(".text")
    k0.gen_k0(a, "t1tab")
    k1.gen_k1(a)
    k3.gen_k3(a, "gdftab")
    a.raw('.section .rodata,"a"')
    a.raw(".p2align 6")
    a.raw(kd("k0_kernel", 256 if common.STAMP else 240, 96))
    a.raw(kd("k1_kernel", 256, 96))
    a.raw(kd("k3_kernel", 256 if common.STAMP else 248, 96))
    gen_t1(a)
    gen_gdf(a)
    k1.gen_ctab(a)
    open(out, "w").write(a.text())

if __name__ == "__main__":
    main(sys.argv[1] if len(sys.argv) > 1 else "parallel_sum__spectral_gfnet__glu_gated_geglu__prompt.s")
```

```python
import numpy as np

S, D, F, NK = 2048, 448, 1792, 225
NT3 = 29
NSTEP = 112 + NT3
OFF_HZ = 0
SZ_HZ = 64 * NSTEP * 1024
OFF_WDF = OFF_HZ + SZ_HZ
SZ_WDF = 14 * NSTEP * 1024
OFF_WT = OFF_WDF + SZ_WDF
SZ_WT = 225 * 8192
OFF_UF = OFF_WT + SZ_WT
SZ_UF = 512 * 64 * 64
WS_BYTES = 268435456

def bf16(x):
    u = int(np.float32(x).view(np.uint32))
    return ((u + 0x7FFF + ((u >> 16) & 1)) >> 16) & 0xFFFF

def f32hex(x):
    return "0x%08x" % int(np.float32(x).view(np.uint32))

class Asm:
    def __init__(self):
        self.l = []
    def __call__(self, s):
        self.l.append("    " + s)
    def label(self, s):
        self.l.append(s + ":")
    def raw(self, s):
        self.l.append(s)
    def c(self, s):
        self.l.append("    ; " + s)
    def text(self):
        return "\n".join(self.l) + "\n"

def srd(a, sd, ptr_lo, nbytes):
    a(f"s_mov_b32 s{sd}, s{ptr_lo}")
    a(f"s_and_b32 s{sd+1}, s{ptr_lo+1}, 0xffff")
    a(f"s_mov_b32 s{sd+2}, {nbytes}")
    a(f"s_mov_b32 s{sd+3}, 0x00020000")

def kd(name, vgpr, sgpr, accum=None):
    if accum is None:
        accum = (vgpr + 3) // 4 * 4
    return f""".amdhsa_kernel {name}
  .amdhsa_next_free_vgpr {vgpr}
  .amdhsa_next_free_sgpr {sgpr}
  .amdhsa_accum_offset {accum}
  .amdhsa_group_segment_fixed_size 0
  .amdhsa_kernarg_size 80
  .amdhsa_user_sgpr_count 2
  .amdhsa_user_sgpr_kernarg_segment_ptr 1
  .amdhsa_system_sgpr_workgroup_id_x 1
.end_amdhsa_kernel
"""

def khead(a, name):
    a.raw(f".globl {name}")
    a.raw(".p2align 8")
    a.raw(f".type {name},@function")
    a.label(name)

STAMP = False
CUR = None
import os
MAPX = bool(os.environ.get('MAPX'))
PFW = bool(int(os.environ.get('PFW', '0')))
ROT1 = bool(int(os.environ.get('ROT1', '0')))
PFB = bool(int(os.environ.get('PFB', '1')))
FFT1 = bool(int(os.environ.get('FFT1', '0')))
NOSIDE = bool(os.environ.get('NOSIDE'))
def stamp(a, i):
    if globals()['STAMP'] and globals()['STAMP'] == globals()['CUR']:
        a("s_memtime s[80:81]")
        a("s_waitcnt lgkmcnt(0)")
        a(f"s_mov_b32 s{84+i}, s80")
        if i == 0:
            a("s_memrealtime s[80:81]")
            a("s_waitcnt lgkmcnt(0)")
            a(f"s_mov_b32 s94, s80")

def stamp_flush(a, n, wave_sreg):
    if globals()['STAMP'] and globals()['STAMP'] == globals()['CUR']:
        a("s_load_dwordx2 s[80:81], s[0:1], 72")
        a("s_waitcnt lgkmcnt(0)")
        a("s_and_b32 s81, s81, 0xffff")
        a("s_mov_b32 s82, 0x10000000")
        a("s_mov_b32 s83, 0x00020000")
        a("s_lshl_b32 s79, s2, 3")
        a(f"s_add_u32 s79, s79, s{wave_sreg}")
        a("s_lshl_b32 s79, s79, 6")
        a(f"s_add_u32 s79, s79, {OFF_DBG}")
        a("v_mov_b32 v250, 0")
        a("s_memrealtime s[76:77]")
        a("s_waitcnt lgkmcnt(0)")
        a("v_mov_b32 v251, s94")
        a("buffer_store_dword v251, v250, s[80:83], s79 offen offset:56")
        a("v_mov_b32 v251, s76")
        a("buffer_store_dword v251, v250, s[80:83], s79 offen offset:60")
        for i in range(n):
            a(f"v_mov_b32 v251, s{84+i}")
            a(f"buffer_store_dword v251, v250, s[80:83], s79 offen offset:{4*i}")
OFF_DBG = 64 << 20
OFF_XNF = OFF_UF + SZ_UF
SZ_XNF = 64 * 28 * 1024
```

```python
from common import *
import common

K0_LDS = 32 * 912
TB = 96
ACC0 = 208
AF = 224
SJ = 24
RAW = 40
FV = 56

def gen_k0(a, tabsym, gdsym):
    common.CUR = "k0"
    khead(a, "k0_kernel")
    a("s_cmp_ge_u32 s2, 256")
    a("s_cbranch_scc1 K0_end")
    a("s_load_dwordx16 s[4:19], s[0:1], 0")
    a("s_load_dwordx4 s[20:23], s[0:1], 64")
    a("s_getpc_b64 s[58:59]")
    a(f"s_add_u32 s58, s58, {tabsym}@rel32@lo+4")
    a(f"s_addc_u32 s59, s59, {tabsym}@rel32@hi+12")
    a("s_getpc_b64 s[56:57]")
    a(f"s_add_u32 s56, s56, {gdsym}@rel32@lo+4")
    a(f"s_addc_u32 s57, s57, {gdsym}@rel32@hi+12")
    a("v_lshrrev_b32 v1, 6, v0")
    a("s_nop 0")
    a("v_readfirstlane_b32 s52, v1")
    a("v_and_b32 v1, 63, v0")
    a("s_and_b32 s53, s2, 3")
    a("s_lshr_b32 s54, s2, 2")
    a("s_lshl_b32 s55, s52, 8")
    a("s_add_u32 s55, s55, s54")
    a("s_mul_i32 s55, s55, 896")
    a("s_mov_b32 s60, 0x3f803f80")
    for i in range(16):
        a(f"v_mov_b32 v{RAW+i}, 0")
    a("v_lshlrev_b32 v2, 4, v1")
    a("s_waitcnt lgkmcnt(0)")
    stamp(a, 0)
    srd(a, 24, 4, S * D * 2)
    srd(a, 36, 22, WS_BYTES)
    srd(a, 40, 6, S * NK * 2)
    srd(a, 44, 8, S * NK * 2)
    srd(a, 48, 16, F * D * 2)
    srd(a, 28, 58, 16 * 28 * 1024)
    srd(a, 32, 56, 14 * 29 * 1024)
    a("s_mov_b32 exec_hi, 0x00ffffff")
    for r in range(4):
        a(f"buffer_load_dwordx4 v[{RAW+4*r}:{RAW+4*r+3}], v2, s[24:27], s55 offen")
        if r < 3:
            a(f"s_add_u32 s55, s55, {64*896}")
    a("s_mov_b32 exec_hi, -1")
    a("s_lshl_b32 s68, s2, 3")
    a("s_add_u32 s68, s68, s52")
    a("s_lshr_b32 s69, s68, 2")
    a("s_and_b32 s70, s68, 3")
    a("s_lshl_b32 s70, s70, 6")
    a("v_add_u32 v5, s70, v1")
    a("s_and_b32 s70, s69, 31")
    a("s_lshr_b32 s71, s69, 5")
    a("s_lshl_b32 s71, s71, 7")
    a("s_add_u32 s70, s70, s71")
    a("s_mul_i32 s70, s70, 450")
    a("v_lshlrev_b32 v6, 1, v5")
    a("v_add_u32 v6, s70, v6")
    a("s_lshr_b32 s72, s68, 4")
    a("s_and_b32 s73, s68, 15")
    a("s_min_u32 s74, s72, 111")
    a("s_min_u32 s75, s73, 13")
    a("s_lshl_b32 s76, s74, 4")
    a("v_lshrrev_b32 v7, 5, v1")
    a("v_lshlrev_b32 v16, 2, v7")
    a("v_add_u32 v16, s76, v16")
    a("s_movk_i32 s64, 896")
    a("v_mul_lo_u32 v16, v16, s64")
    a("v_and_b32 v17, 31, v1")
    a("s_lshl_b32 s76, s75, 5")
    a("v_add_u32 v17, s76, v17")
    a("v_lshl_add_u32 v16, v17, 1, v16")
    a("s_lshl_b32 s77, s53, 2")
    a("s_add_u32 s77, s77, s52")
    a(f"s_mul_i32 s77, s77, {28*1024}")
    side = []
    for j in range(4):
        side.append([f"s_mov_b32 s71, {j*32*450}", f"buffer_load_ushort v{SJ+j}, v6, s[40:43], s71 offen"])
        side.append([f"buffer_load_ushort v{SJ+4+j}, v6, s[44:47], s71 offen"])
    for i in range(8):
        off = (8 * (i >> 2) + (i & 3)) * 896
        if off < 4096:
            side.append([f"buffer_load_ushort v{SJ+8+i}, v16, s[48:51], 0 offen offset:{off}"])
        else:
            side.append([f"s_movk_i32 s71, {off}", f"buffer_load_ushort v{SJ+8+i}, v16, s[48:51], s71 offen"])
    a("s_lshl_b32 s65, s68, 10")
    side.append([f"buffer_load_dwordx4 v[20:23], v2, s[32:35], s65 offen"])
    if common.PFB:
        srd(a, 80, 12, D * F * 2)
        srd(a, 84, 14, D * F * 2)
        a("s_lshr_b32 s66, s2, 3")
        a("s_mul_i32 s66, s66, 14")
        a("s_min_u32 s67, s52, 6")
        a("s_lshl_b32 s67, s67, 1")
        a("s_add_u32 s66, s66, s67")
        a("s_mul_i32 s66, s66, 3584")
        a("s_and_b32 s67, s2, 7")
        a("s_lshr_b32 s67, s67, 1")
        a("s_mul_i32 s67, s67, 896")
        a("s_add_u32 s66, s66, s67")
        a("v_min_u32 v18, 55, v1")
        a("v_lshlrev_b32 v18, 4, v18")
        for m in range(2):
            for r in range(2):
                side.append([f"buffer_load_dwordx4 v[240:243], v18, s[{80+4*m}:{83+4*m}], s66 offen offset:{3584*r}"])
    t1l = []
    for t in range(28):
        g = [f"buffer_load_dwordx4 v[{TB+4*t}:{TB+4*t+3}], v2, s[28:31], s77 offen offset:{(t&3)*1024}"]
        if t & 3 == 3:
            g.append("s_add_u32 s77, s77, 4096")
        t1l.append(g)
    a("s_waitcnt vmcnt(0)")
    stamp(a, 1)
    main = a
    a = Asm()
    SUM = [8, 9, 10, 11]
    T2 = [12, 13, 14, 15]
    MB = [88, 89, 90, 91]
    VR = [92, 93, 94, 95]
    R4 = range(4)
    for r in R4:
        a(f"v_dot2_f32_bf16 v{SUM[r]}, v{RAW+4*r}, s60, 0")
        a(f"v_dot2_f32_bf16 v{T2[r]}, v{RAW+4*r+1}, s60, 0")
    for r in R4:
        a(f"v_dot2_f32_bf16 v{SUM[r]}, v{RAW+4*r+2}, s60, v{SUM[r]}")
        a(f"v_dot2_f32_bf16 v{T2[r]}, v{RAW+4*r+3}, s60, v{T2[r]}")
    a("s_nop 3")
    for r in R4:
        a(f"v_add_f32 v{SUM[r]}, v{SUM[r]}, v{T2[r]}")
    def reduce4(vs, sd):
        a("s_nop 1")
        for sh in (1, 2, 4, 8):
            for v in vs:
                a(f"v_add_f32_dpp v{v}, v{v}, v{v} row_shr:{sh} row_mask:0xf bank_mask:0xf bound_ctrl:0")
        for v in vs:
            a(f"v_add_f32_dpp v{v}, v{v}, v{v} row_bcast:15 row_mask:0xa bank_mask:0xf")
        for v in vs:
            a(f"v_add_f32_dpp v{v}, v{v}, v{v} row_bcast:31 row_mask:0xc bank_mask:0xf")
        for i, v in enumerate(vs):
            a(f"v_readlane_b32 s{sd+i}, v{v}, 63")
        a("s_nop 1")
    reduce4(SUM, 61)
    for r in R4:
        a(f"v_mov_b32 v{SUM[r]}, s{61+r}")
    for r in R4:
        a(f"v_mul_f32 v{SUM[r]}, {f32hex(1.0/448)}, v{SUM[r]}")
    for r in R4:
        a(f"v_cvt_pk_bf16_f32 v{MB[r]}, v{SUM[r]}, v{SUM[r]}")
    for r in R4:
        a(f"v_and_b32 v{MB[r]}, 0xffff0000, v{MB[r]}")
    for r in R4:
        for i in range(4):
            a(f"v_lshlrev_b32 v{FV+8*r+2*i}, 16, v{RAW+4*r+i}")
            a(f"v_and_b32 v{FV+8*r+2*i+1}, 0xffff0000, v{RAW+4*r+i}")
        for i in range(8):
            a(f"v_sub_f32 v{FV+8*r+i}, v{FV+8*r+i}, v{MB[r]}")
        a(f"v_mul_f32 v{VR[r]}, v{FV+8*r}, v{FV+8*r}")
        for i in range(1, 8):
            a(f"v_fmac_f32 v{VR[r]}, v{FV+8*r+i}, v{FV+8*r+i}")
    a("v_cmp_gt_u32 vcc, 56, v1")
    a("s_nop 1")
    for r in R4:
        a(f"v_cndmask_b32 v{VR[r]}, 0, v{VR[r]}, vcc")
    reduce4(VR, 61)
    for r in R4:
        a(f"v_mov_b32 v{VR[r]}, s{61+r}")
    def each(fmt):
        for r in R4:
            a(fmt.format(v=VR[r], m=SUM[r], mb=MB[r], t=T2[r]))
    each("v_mul_f32 v{v}, " + f32hex(1.0/448) + ", v{v}")
    each("v_sub_f32 v{t}, v{m}, v{mb}")
    each("v_fma_f32 v{v}, -v{t}, v{t}, v{v}")
    each("v_max_f32 v{v}, 0, v{v}")
    each("v_cvt_pk_bf16_f32 v{v}, v{v}, v{v}")
    each("v_and_b32 v{v}, 0xffff0000, v{v}")
    each("v_add_f32 v{v}, " + f32hex(1e-5) + ", v{v}")
    each("v_cvt_pk_bf16_f32 v{v}, v{v}, v{v}")
    each("v_and_b32 v{v}, 0xffff0000, v{v}")
    each("v_sqrt_f32 v{v}, v{v}")
    a("s_nop 0")
    each("v_cvt_pk_bf16_f32 v{v}, v{v}, v{v}")
    each("v_and_b32 v{v}, 0xffff0000, v{v}")
    each("v_rcp_f32 v{t}, v{v}")
    a(f"s_mul_i32 s61, s52, {4*912}")
    a("v_add_u32 v3, s61, v2")
    for r in R4:
        for i in range(4):
            a(f"v_cvt_pk_bf16_f32 v{RAW+4*r+i}, v{FV+8*r+2*i}, v{FV+8*r+2*i+1}")
        for i in range(4):
            a(f"v_lshlrev_b32 v{FV+8*r+2*i}, 16, v{RAW+4*r+i}")
            a(f"v_and_b32 v{FV+8*r+2*i+1}, 0xffff0000, v{RAW+4*r+i}")
        for i in range(0, 8, 2):
            a(f"v_mul_f32 v{SUM[r]}, v{FV+8*r+i}, v{T2[r]}")
            a(f"v_mul_f32 v{MB[r]}, v{FV+8*r+i+1}, v{T2[r]}")
            a(f"v_fma_f32 v{FV+8*r+i}, -v{SUM[r]}, v{VR[r]}, v{FV+8*r+i}")
            a(f"v_fma_f32 v{FV+8*r+i+1}, -v{MB[r]}, v{VR[r]}, v{FV+8*r+i+1}")
            a(f"v_fma_f32 v{FV+8*r+i}, v{FV+8*r+i}, v{T2[r]}, v{SUM[r]}")
            a(f"v_fma_f32 v{FV+8*r+i+1}, v{FV+8*r+i+1}, v{T2[r]}, v{MB[r]}")
        for i in range(4):
            a(f"v_cvt_pk_bf16_f32 v{RAW+4*r+i}, v{FV+8*r+2*i}, v{FV+8*r+2*i+1}")
        a("s_mov_b32 exec_hi, 0x00ffffff")
        a(f"ds_write_b128 v3, v[{RAW+4*r}:{RAW+4*r+3}] offset:{r*912}")
        a("s_mov_b32 exec_hi, -1")
    ln = [x.strip() for x in a.l]
    a = main
    def emit_ln(mem):
        step = max(1, (len(ln) - 20) // len(mem))
        mi = 0
        for i, x in enumerate(ln):
            a(x)
            if i % step == step - 1 and mi < len(mem) and not x.startswith("s_mov_b32 exec_hi, 0x00") and not x.startswith("ds_write"):
                for y in mem[mi]: a(y)
                mi += 1
        while mi < len(mem):
            for y in mem[mi]: a(y)
            mi += 1
    a("s_cmp_ge_u32 s52, 4")
    a("s_cbranch_scc1 K0_ln2")
    emit_ln(t1l + side)
    a("s_branch K0_ln3")
    a.label("K0_ln2")
    emit_ln(side)
    a.label("K0_ln3")
    a("v_and_b32 v4, 31, v1")
    a("s_movk_i32 s61, 912")
    a("v_mul_lo_u32 v4, v4, s61")
    a("v_lshl_add_u32 v4, v7, 4, v4")
    a("s_waitcnt lgkmcnt(0)")
    a("s_barrier")
    stamp(a, 2)
    a("s_cmp_ge_u32 s52, 4")
    a("s_cbranch_scc1 K0_xn")
    for t in range(3):
        a(f"ds_read_b128 v[{AF+4*t}:{AF+4*t+3}], v4 offset:{32*t}")
    a("s_waitcnt vmcnt(0)")
    acc = f"v[{ACC0}:{ACC0+15}]"
    for t in range(28):
        if t + 3 < 28:
            a(f"ds_read_b128 v[{AF+4*((t+3)&3)}:{AF+4*((t+3)&3)+3}], v4 offset:{32*(t+3)}")
        a(f"s_waitcnt lgkmcnt({min(3, 27-t)})")
        a(f"v_mfma_f32_32x32x16_bf16 {acc}, v[{AF+4*(t&3)}:{AF+4*(t&3)+3}], v[{TB+4*t}:{TB+4*t+3}], {'0' if t == 0 else acc}")
    a("v_and_b32 v3, 31, v1")
    a("v_lshlrev_b32 v3, 12, v3")
    a("v_lshl_add_u32 v3, v7, 9, v3")
    a("s_lshl_b32 s61, s53, 2")
    a("s_add_u32 s61, s61, s52")
    a("s_lshl_b32 s61, s61, 17")
    a("s_lshr_b32 s62, s54, 5")
    a("s_lshl_b32 s62, s62, 11")
    a("s_add_u32 s61, s61, s62")
    a("s_and_b32 s62, s54, 31")
    a("s_lshl_b32 s62, s62, 4")
    a("s_add_u32 s61, s61, s62")
    a(f"s_add_u32 s61, s61, {OFF_UF}")
    a("s_nop 7")
    a("s_nop 3")
    for r in range(0, 16, 2):
        a(f"v_cvt_pk_bf16_f32 v{AF + r//2}, v{ACC0+r}, v{ACC0+r+1}")
    for t in range(2):
        a(f"buffer_store_dwordx4 v[{AF+4*t}:{AF+4*t+3}], v3, s[36:39], s61 offen offset:{1024*t}")
    a("s_branch K0_side")
    a.label("K0_xn")
    a("s_mul_i32 s61, s53, 7")
    a("s_sub_u32 s62, s52, 4")
    a("s_add_u32 s61, s61, s62")
    a("s_lshl_b32 s63, s61, 5")
    a("v_add_u32 v4, s63, v4")
    a(f"ds_read_b128 v[{TB}:{TB+3}], v4")
    a(f"ds_read_b128 v[{TB+4}:{TB+7}], v4 offset:128")
    a(f"s_mul_i32 s63, s54, 28")
    a("s_add_u32 s63, s63, s61")
    a("s_lshl_b32 s63, s63, 10")
    a(f"s_add_u32 s63, s63, {OFF_XNF}")
    a("s_waitcnt vmcnt(0) lgkmcnt(0)")
    a(f"buffer_store_dwordx4 v[{TB}:{TB+3}], v2, s[36:39], s63 offen")
    a("s_cmp_ge_u32 s62, 3")
    a("s_cbranch_scc1 K0_side")
    a("s_add_u32 s63, s63, 4096")
    a(f"buffer_store_dwordx4 v[{TB+4}:{TB+7}], v2, s[36:39], s63 offen")
    a.label("K0_side")
    stamp(a, 3)
    a(f"v_lshl_or_b32 v{SJ+0}, v{SJ+1}, 16, v{SJ+0}")
    a(f"v_lshl_or_b32 v{SJ+1}, v{SJ+3}, 16, v{SJ+2}")
    a(f"v_lshl_or_b32 v{SJ+2}, v{SJ+5}, 16, v{SJ+4}")
    a(f"v_lshl_or_b32 v{SJ+3}, v{SJ+7}, 16, v{SJ+6}")
    for j in range(4):
        a(f"v_lshl_or_b32 v{SJ+4+j}, v{SJ+8+2*j+1}, 16, v{SJ+8+2*j}")
    a("v_lshlrev_b32 v3, 13, v5")
    a("s_lshl_b32 s70, s69, 4")
    a(f"s_add_u32 s70, s70, {OFF_WT}")
    a("v_cmp_gt_u32 vcc, 225, v5")
    a("s_and_saveexec_b64 s[78:79], vcc")
    a(f"buffer_store_dwordx4 v[{SJ}:{SJ+3}], v3, s[36:39], s70 offen")
    a("s_mov_b64 exec, s[78:79]")
    a("s_cmp_ge_u32 s68, 406")
    a("s_cbranch_scc1 K0_nogd")
    a("s_mul_i32 s70, s68, 2260")
    a("s_lshr_b32 s70, s70, 16")
    a(f"s_mul_i32 s71, s70, {NSTEP-29}")
    a("s_add_u32 s70, s71, s68")
    a("s_add_u32 s70, s70, 112")
    a("s_lshl_b32 s70, s70, 10")
    a(f"s_add_u32 s70, s70, {OFF_WDF}")
    a(f"buffer_store_dwordx4 v[20:23], v2, s[36:39], s70 offen")
    a.label("K0_nogd")
    a("s_cmp_ge_u32 s72, 112")
    a("s_cbranch_scc1 K0_fin")
    a("s_cmp_ge_u32 s73, 14")
    a("s_cbranch_scc1 K0_fin")
    a(f"s_mul_i32 s70, s73, {NSTEP}")
    a("s_add_u32 s70, s70, s72")
    a("s_lshl_b32 s70, s70, 10")
    a(f"s_add_u32 s70, s70, {OFF_WDF}")
    a(f"buffer_store_dwordx4 v[{SJ+4}:{SJ+7}], v2, s[36:39], s70 offen")
    a.label("K0_fin")
    stamp(a, 4)
    stamp_flush(a, 5, 52)
    a.label("K0_end")
    a("s_endpgm")
```

```python
from common import *
import common

XF = 16
ACC = 128
BF = 192
K1_LDS = 122880
PRE = 3

C1 = -2.0 * 0.7978845608028654 * 1.4426950408889634
C2 = C1 * 0.044715

FR = 16
NG = 48
AC = 64
CK = 128
WV = 208
TW = 240
TMP = 248
ZL = 57344
TWL = 20480

def cfrag32(kind, t):
    return CK + 4 * (kind * 2 + t)
def cfrag64(kind, tau, beta, t):
    return CK + 16 + 4 * (kind * 8 + tau * 4 + beta * 2 + t)

def gen_ctab(a):
    a.raw(".p2align 8")
    a.raw(".type ctab,@object")
    a.label("ctab")
    fn = [np.cos, np.sin]
    def emit(vals):
        for i in range(0, 512, 16):
            dw = [(vals[i + 2 * j] | (vals[i + 2 * j + 1] << 16)) for j in range(8)]
            a.raw(".long " + ",".join("0x%x" % d for d in dw))
    for kind in range(2):
        for t in range(2):
            vals = []
            for l in range(64):
                h = l >> 5
                for i in range(8):
                    sl = 8 * (2 * t + (i >> 2)) + 4 * h + (i & 3)
                    vals.append(bf16(fn[kind](2 * np.pi * (((l & 31) * sl) % 32) / 32)))
            emit(vals)
    for kind in range(2):
        for tau in range(2):
            for beta in range(2):
                for t in range(2):
                    vals = []
                    for l in range(64):
                        h = l >> 5
                        for i in range(8):
                            sl = 32 * beta + 8 * (2 * t + (i >> 2)) + 4 * h + (i & 3)
                            vals.append(bf16(fn[kind](2 * np.pi * ((((l & 31) + 32 * tau) * sl) % 64) / 64)))
                    emit(vals)
    for stage in range(2):
        for beta in range(2):
            for p in range(8):
                dws = []
                for l in range(64):
                    h = l >> 5; c = l & 31
                    cs = []; ss = []
                    for e in range(2):
                        r = 2 * p + e
                        g, j = r >> 2, r & 3
                        if stage == 0:
                            m = c * (32 * beta + 8 * g + 4 * h + j)
                            sg = 1.0
                        else:
                            m = (c + 32 * beta) * (8 * g + 4 * h + j)
                            sg = -1.0
                        th = 2 * np.pi * (m % 2048) / 2048
                        cs.append(np.cos(th)); ss.append(sg * np.sin(th))
                    dws += [f32hex(cs[0]), f32hex(cs[1]), f32hex(ss[0]), f32hex(ss[1])]
                for i in range(0, 256, 16):
                    a.raw(".long " + ",".join(dws[i:i + 16]))

def fr(ri, beta, t):
    r = FR + ((ri * 2 + beta) * 2 + t) * 4
    return f"v[{r}:{r+3}]"
def ng(beta, t):
    r = NG + (beta * 2 + t) * 4
    return f"v[{r}:{r+3}]"
def acc(ri, beta):
    r = AC + (ri * 2 + beta) * 16
    return f"v[{r}:{r+15}]"
def ca(idx):
    return f"v[{idx}:{idx+3}]"

def gen_fft(a):
    a("s_lshl_b32 s21, s2, 3")
    a("s_add_u32 s21, s21, s52")
    a("s_cmp_lt_u32 s21, 225")
    a("s_cselect_b32 s26, -1, 0")
    a("s_min_u32 s21, s21, 224")
    srd(a, 8, 22, WS_BYTES)
    srd(a, 12, 58, 52 * 1024)
    a("v_lshrrev_b32 v3, 5, v1")
    a("v_lshlrev_b32 v4, 4, v1")
    a("s_lshl_b32 s27, s21, 13")
    a(f"s_add_u32 s27, s27, {OFF_UF}")
    a("s_add_u32 s28, s27, 4096")
    def uload(beta):
        for ri in range(2):
            for t in range(2):
                a(f"buffer_load_dwordx4 {fr(ri,beta,t)}, v4, s[8:11], s{27+ri} offen offset:{beta*2048+t*1024}")
    uload(0)
    a("s_mul_i32 s29, s52, 7168")
    a("s_mov_b32 m0, s29")
    for i in range(4):
        a(f"buffer_load_dwordx4 v4, s[12:15], s29 offen offset:{i*1024} lds")
    a("s_add_u32 s29, s29, 4096")
    a("s_mov_b32 m0, s29")
    for i in range(3):
        a(f"buffer_load_dwordx4 v4, s[12:15], s29 offen offset:{i*1024} lds")
    uload(1)
    a("s_mov_b32 s31, 0x80008000")
    a("s_lshl_b32 s27, s21, 13")
    a(f"s_add_u32 s27, s27, {OFF_WT}")
    a("s_add_u32 s28, s27, 4096")
    a("s_waitcnt vmcnt(4)")
    a("s_barrier")
    stamp(a, 1)
    for f in range(4):
        a(f"ds_read_b128 {ca(CK+4*f)}, v4 offset:{f*1024}")
    for i in range(8):
        a(f"v_xor_b32 v{NG+i}, s31, v{FR+i}")
    a("s_waitcnt lgkmcnt(0)")

    def fdst(ri, beta, r):
        return FR + ((ri * 2 + beta) * 2 + (r >> 3)) * 4 + ((r & 7) >> 1)
    def ndst(beta, r):
        return NG + (beta * 2 + (r >> 3)) * 4 + ((r & 7) >> 1)
    M = "v_mfma_f32_32x32x16_bf16"
    def st1(beta):
        o = []
        for t in range(2):
            z = t == 0
            o.append(f"{M} {acc(0,beta)}, {fr(0,beta,t)}, {ca(cfrag32(0,t))}, {'0' if z else acc(0,beta)}")
            o.append(f"{M} {acc(1,beta)}, {fr(1,beta,t)}, {ca(cfrag32(0,t))}, {'0' if z else acc(1,beta)}")
            o.append(f"{M} {acc(0,beta)}, {fr(1,beta,t)}, {ca(cfrag32(1,t))}, {acc(0,beta)}")
            o.append(f"{M} {acc(1,beta)}, {ng(beta,t)}, {ca(cfrag32(1,t))}, {acc(1,beta)}")
        return o
    def st2(dl, beta):
        o = []
        for t in range(2):
            z = beta == 0 and t == 0
            o.append(f"{M} {acc(0,dl)}, {ca(cfrag64(0,dl,beta,t))}, {fr(0,beta,t)}, {'0' if z else acc(0,dl)}")
            o.append(f"{M} {acc(1,dl)}, {ca(cfrag64(0,dl,beta,t))}, {fr(1,beta,t)}, {'0' if z else acc(1,dl)}")
            o.append(f"{M} {acc(0,dl)}, {ca(cfrag64(1,dl,beta,t))}, {fr(1,beta,t)}, {acc(0,dl)}")
            o.append(f"{M} {acc(1,dl)}, {ca(cfrag64(1,dl,beta,t))}, {ng(beta,t)}, {acc(1,dl)}")
        return o
    def st3(beta, dl):
        o = []
        for t in range(2):
            z = dl == 0 and t == 0
            o.append(f"{M} {acc(0,beta)}, {fr(0,dl,t)}, {ca(cfrag64(0,beta,dl,t))}, {'0' if z else acc(0,beta)}")
            o.append(f"{M} {acc(1,beta)}, {fr(1,dl,t)}, {ca(cfrag64(0,beta,dl,t))}, {'0' if z else acc(1,beta)}")
            o.append(f"{M} {acc(0,beta)}, {ng(dl,t)}, {ca(cfrag64(1,beta,dl,t))}, {acc(0,beta)}")
            o.append(f"{M} {acc(1,beta)}, {fr(0,dl,t)}, {ca(cfrag64(1,beta,dl,t))}, {acc(1,beta)}")
        return o
    def st4(beta):
        o = []
        for t in range(2):
            z = t == 0
            o.append(f"{M} {acc(0,beta)}, {fr(0,beta,t)}, {ca(cfrag32(0,t))}, {'0' if z else acc(0,beta)}")
            o.append(f"{M} {acc(1,beta)}, {fr(1,beta,t)}, {ca(cfrag32(0,t))}, {'0' if z else acc(1,beta)}")
            o.append(f"{M} {acc(0,beta)}, {ng(beta,t)}, {ca(cfrag32(1,t))}, {acc(0,beta)}")
            o.append(f"{M} {acc(1,beta)}, {fr(0,beta,t)}, {ca(cfrag32(1,t))}, {acc(1,beta)}")
        return o
    st = {"n": 0, "idx": {}}
    def emit(x):
        if isinstance(x, str):
            a(x)
            if x.startswith("ds_"):
                st["n"] += 1
        elif x[0] == "rd":
            a(x[2]); st["idx"][x[1]] = st["n"]; st["n"] += 1
        elif x[0] == "wt":
            a(f"s_waitcnt lgkmcnt({min(15, st['n'] - st['idx'][x[1]] - 1)})")
    def rd_tw(stage, beta, p):
        return ("rd", ("tw", stage, beta, p), f"ds_read_b128 v[{WV+4*p}:{WV+4*p+3}], v4 offset:{TWL+((stage*2+beta)*8+p)*1024}")
    def rd_w(i):
        return ("rd", ("w", i), f"ds_read_b128 v[{WV+4*i}:{WV+4*i+3}], v6 offset:{i*1024}")
    def tw(stage, beta, nxt):
        negri = 0 if stage == 0 else 1
        gs = []
        for p in range(8):
            g = [("wt", ("tw", stage, beta, p))]
            r = 2 * p
            R = AC + beta * 16 + r
            I = AC + (2 + beta) * 16 + r
            c = WV + 4 * p; s = c + 2
            u = TMP + 4 * (p & 1); t = u + 2
            for e in range(2):
                g.append(f"v_mul_f32 v{u+e}, v{I+e}, v{c+e}")
                g.append(f"v_mul_f32 v{t+e}, v{R+e}, v{c+e}")
            for e in range(2):
                g.append(f"v_fma_f32 v{u+e}, -v{R+e}, v{s+e}, v{u+e}")
                g.append(f"v_fmac_f32 v{t+e}, v{I+e}, v{s+e}")
            if nxt is not None:
                g.append(nxt(p))
            g.append(f"v_cvt_pk_bf16_f32 v{fdst(1,beta,r)}, v{u}, v{u+1}")
            g.append(f"v_cvt_pk_bf16_f32 v{fdst(0,beta,r)}, v{t}, v{t+1}")
            x = t if negri == 0 else u
            g.append(f"v_cvt_pk_bf16_f32 v{ndst(beta,r)}, -v{x}, -v{x+1}")
            gs.append(g)
        return gs
    def wm(dl):
        gs = []
        for r in range(0, 16, 2):
            g, jp = r >> 2, (r & 3) >> 1
            R = AC + dl * 16 + r
            I = AC + (2 + dl) * 16 + r
            wr = WV + dl * 16 + 4 * g + jp
            wi = wr + 2
            c = TW + 4 * ((r >> 1) & 1); s = c + 2
            u = TMP + 4 * ((r >> 1) & 1); t = u + 2
            gg = [("wt", ("w", dl * 4 + g)),
                f"v_lshlrev_b32 v{c}, 16, v{wr}",
                f"v_and_b32 v{c+1}, 0xffff0000, v{wr}",
                f"v_lshlrev_b32 v{s}, 16, v{wi}",
                f"v_and_b32 v{s+1}, 0xffff0000, v{wi}"]
            if jp == 1:
                gg.append(rd_tw(1, 0, dl * 4 + g))
            gg += [
                f"v_mul_f32 v{u}, v{I}, v{c}", f"v_mul_f32 v{t}, v{R}, v{c}",
                f"v_mul_f32 v{u+1}, v{I+1}, v{c+1}", f"v_mul_f32 v{t+1}, v{R+1}, v{c+1}",
                f"v_fmac_f32 v{u}, v{R}, v{s}", f"v_fma_f32 v{t}, -v{I}, v{s}, v{t}",
                f"v_fmac_f32 v{u+1}, v{R+1}, v{s+1}", f"v_fma_f32 v{t+1}, -v{I+1}, v{s+1}, v{t+1}",
                f"v_cvt_pk_bf16_f32 v{fdst(1,dl,r)}, v{u}, v{u+1}",
                f"v_cvt_pk_bf16_f32 v{fdst(0,dl,r)}, v{t}, v{t+1}",
                f"v_cvt_pk_bf16_f32 v{ndst(dl,r)}, -v{u}, -v{u+1}"]
            gs.append(gg)
        return gs
    def fin(beta):
        gs = []
        for r0 in range(0, 16, 2):
            g_ = []
            for r in (r0, r0 + 1):
                g, j = r >> 2, r & 3
                R = AC + beta * 16 + r
                I = AC + (2 + beta) * 16 + r
                g_ += [f"v_mul_f32 v{R}, s27, v{R}", f"v_mul_f32 v{I}, s27, v{I}",
                       f"v_cvt_pk_bf16_f32 v{R}, v{R}, v{I}",
                       f"ds_write_b32 v2, v{R} offset:{(32*beta+8*g+j)*128}"]
            gs.append(g_)
        return gs
    def mix(ms, gs=None):
        if gs is None:
            for m in ms: a(m)
            return
        gi = 0
        for i, m in enumerate(ms):
            a(m)
            if i >= 1:
                n = 1 if i < len(ms) - 1 else len(gs) - gi
                if i == 1: n = 2
                for _ in range(n):
                    if gi < len(gs):
                        for x in gs[gi]: emit(x)
                        gi += 1
        a("s_nop 1")

    a("s_lshl_b32 s29, s52, 13")
    a(f"s_add_u32 s29, s29, {ZL}")
    a("v_add_u32 v6, s29, v4")
    for i, m in enumerate(st1(0)):
        a(m)
        emit(rd_tw(0, 0, i))
        for f in (4 + 2 * i, 5 + 2 * i):
            emit(f"ds_read_b128 {ca(CK+4*f)}, v4 offset:{f*1024}")
        if i % 4 == 0:
            a("s_mov_b32 m0, s29")
            a("s_add_u32 s29, s29, 4096")
        a(f"buffer_load_dwordx4 v4, s[8:11], s{27+(i>>2)} offen offset:{(i&3)*1024} lds")
    a("s_waitcnt vmcnt(8)")
    for i in range(8, 16):
        a(f"v_xor_b32 v{NG+i}, s31, v{FR+i}")
    a("s_nop 1")
    stamp(a, 2)
    mix(st1(1), tw(0, 0, lambda p: rd_tw(0, 1, p)))
    stamp(a, 3)
    a("s_waitcnt vmcnt(0)")
    mix(st2(0, 0), tw(0, 1, lambda p: rd_w(p)))
    mix(st2(0, 1) + st2(1, 0))
    stamp(a, 4)
    mix(st2(1, 1), wm(0))
    mix(st3(0, 0), wm(1))
    mix(st3(0, 1) + st3(1, 0))
    stamp(a, 5)
    mix(st3(1, 1), tw(1, 0, lambda p: rd_tw(1, 1, p)))
    mix(st4(0), tw(1, 1, None))
    a("s_cmp_eq_u32 s21, 0")
    a("s_cselect_b32 s27, 1, 0")
    a("s_cmp_eq_u32 s21, 224")
    a("s_cselect_b32 s27, 1, s27")
    a("s_cmp_eq_u32 s27, 1")
    a(f"s_mov_b32 s28, {f32hex(2.0/(448*2048))}")
    a(f"s_cselect_b32 s27, {f32hex(1.0/(448*2048))}, s28")
    a("s_and_b32 s27, s27, s26")
    a("v_and_b32 v2, 31, v1")
    a("v_lshlrev_b32 v2, 2, v2")
    a("v_lshl_add_u32 v2, v3, 9, v2")
    a("s_lshl_b32 s28, s52, 13")
    a(f"s_add_u32 s28, s28, {ZL}")
    a("v_add_u32 v2, s28, v2")
    mix(st4(1), fin(0))
    stamp(a, 6)
    a("v_and_b32 v5, 31, v1")
    a("v_lshlrev_b32 v5, 2, v5")
    a("v_lshl_add_u32 v5, v3, 15, v5")
    a("s_lshl_b32 s28, s52, 7")
    a(f"s_add_u32 s28, s28, {ZL}")
    a("v_add_u32 v5, s28, v5")
    a(f"s_mul_i32 s28, s52, {NSTEP}")
    a("s_add_u32 s28, s28, s2")
    a("s_add_u32 s28, s28, 112")
    a("s_lshl_b32 s28, s28, 10")
    a(f"s_add_u32 s28, s28, {OFF_HZ}")
    a("s_nop 7")
    for g in fin(1):
        for x in g: a(x)
    a("s_waitcnt lgkmcnt(0)")
    a("s_barrier")
    for i in range(8):
        for q in range(4):
            a(f"ds_read_b32 v{FR+4*i+q}, v5 offset:{q*8192+i*1024}")
    for i in range(8):
        a(f"s_waitcnt lgkmcnt({min(28-4*i, 15)})")
        a(f"buffer_store_dwordx4 v[{FR+4*i}:{FR+4*i+3}], v4, s[8:11], s28 offen")
        a(f"s_add_u32 s28, s28, {8*NSTEP*1024}")

def gen_k1(a):
    common.CUR = "k1"
    khead(a, "k1_kernel")
    a("s_cmp_ge_u32 s2, 256")
    a("s_cbranch_scc1 K1_end")
    a("s_load_dwordx4 s[12:15], s[0:1], 32")
    a("s_load_dwordx2 s[22:23], s[0:1], 72")
    a("s_getpc_b64 s[58:59]")
    a(f"s_add_u32 s58, s58, ctab@rel32@lo+4")
    a(f"s_addc_u32 s59, s59, ctab@rel32@hi+12")
    a("v_lshrrev_b32 v1, 6, v0")
    a("s_nop 0")
    a("v_readfirstlane_b32 s52, v1")
    a("v_and_b32 v1, 63, v0")
    a("s_cmp_ge_u32 s2, 32")
    a("s_cbranch_scc1 K1_gemm")
    a("s_cmp_ge_u32 s2, 29")
    a("s_cbranch_scc1 K1_end")
    a("s_waitcnt lgkmcnt(0)")
    stamp(a, 0)
    gen_fft(a)
    stamp(a, 7)
    a("s_branch K1_fin2")
    a.label("K1_gemm")
    a("s_sub_u32 s57, s2, 32")
    a("s_lshr_b32 s54, s57, 3")
    a("s_mov_b32 s70, s54")
    a("s_and_b32 s57, s57, 7")
    if common.MAPX:
        a("s_mov_b32 s53, s54")
        a("s_mov_b32 s54, s57")
    else:
        a("s_lshr_b32 s53, s57, 1")
        a("s_mul_i32 s53, s53, 7")
        a("s_lshr_b32 s61, s54, 2")
        a("s_add_u32 s53, s53, s61")
        a("s_and_b32 s54, s54, 3")
        a("s_and_b32 s57, s57, 1")
        a("s_lshl_b32 s57, s57, 2")
        a("s_add_u32 s54, s54, s57")
    a("s_lshl_b32 s55, s54, 3")
    a("s_add_u32 s55, s55, s52")
    a("s_waitcnt lgkmcnt(0)")
    stamp(a, 0)
    srd(a, 36, 22, WS_BYTES)
    a("s_and_b32 s62, s52, 1")
    a("s_cmp_eq_u32 s62, 0")
    a("s_cselect_b32 s28, s12, s14")
    a("s_cselect_b32 s29, s13, s15")
    a("s_and_b32 s29, s29, 0xffff")
    a(f"s_mov_b32 s30, {D*F*2}")
    a("s_mov_b32 s31, 0x00020000")
    a("s_lshl_b32 s57, s53, 7")
    a("v_lshlrev_b32 v2, 4, v1")
    a(f"s_mul_i32 s68, s55, {28*1024}")
    a(f"s_add_u32 s68, s68, {OFF_XNF}")
    a("v_lshrrev_b32 v3, 3, v1")
    a("v_and_b32 v4, 7, v1")
    a("v_bfe_u32 v5, v3, 1, 1")
    a("v_lshlrev_b32 v5, 2, v5")
    a("v_xor_b32 v4, v4, v5")
    a("s_lshr_b32 s63, s52, 1")
    a("s_lshl_b32 s64, s63, 3")
    a("v_add_u32 v3, s64, v3")
    a("s_movk_i32 s56, 3584")
    a("v_mul_lo_u32 v3, v3, s56")
    a("v_lshl_add_u32 v3, v4, 4, v3")
    a("v_add_u32 v3, s57, v3")
    a("s_mul_i32 s65, s62, 57344")
    a("s_lshl_b32 s64, s63, 10")
    a("s_add_u32 s65, s65, s64")
    a("s_lshr_b32 s72, s70, 2")
    a("s_and_b32 s73, s70, 3")
    a("s_lshl_b32 s73, s73, 1")
    a("s_add_u32 s72, s72, s73")
    a("s_cmp_ge_u32 s72, 7")
    a("s_cselect_b32 s73, 7, 0")
    a("s_sub_u32 s72, s72, s73")
    if not common.ROT1:
        a("s_mov_b32 s72, 0")
    a(f"s_mul_i32 s67, s72, {2*3584*32}")
    a("s_lshl_b32 s72, s72, 12")
    a("s_add_u32 s68, s68, s72")
    def chunk(c):
        for i in range(2):
            a("s_mov_b32 m0, s65")
            a("s_add_u32 s65, s65, 4096")
            a(f"buffer_load_dwordx4 v3, s[28:31], s67 offen lds")
            a(f"s_add_u32 s67, s67, {3584*32}")
        for t in range(4 * c, 4 * c + 4):
            a(f"buffer_load_dwordx4 v[{XF+4*t}:{XF+4*t+3}], v2, s[36:39], s68 offen offset:{(t&3)*1024}")
        a("s_add_u32 s68, s68, 4096")
        a(f"s_cmp_ge_u32 s67, {7*2*3584*32}")
        a(f"s_cselect_b32 s72, {7*2*3584*32}, 0")
        a(f"s_cselect_b32 s73, {7*4096}, 0")
        a("s_sub_u32 s67, s67, s72")
        a("s_sub_u32 s68, s68, s73")
    chunk(0)
    a("v_lshrrev_b32 v4, 5, v1")
    a("v_bfe_u32 v5, v1, 2, 2")
    a("v_lshl_add_u32 v4, v4, 3, v5")
    a("v_lshlrev_b32 v4, 7, v4")
    a("v_bfe_u32 v6, v1, 4, 1")
    a("v_bfe_u32 v7, v1, 1, 1")
    a("v_lshl_add_u32 v6, v6, 1, v7")
    a("v_lshrrev_b32 v7, 1, v5")
    a("v_lshlrev_b32 v7, 2, v7")
    a("v_xor_b32 v6, v6, v7")
    a("v_lshl_add_u32 v4, v6, 4, v4")
    a("v_and_b32 v7, 1, v1")
    a("v_lshl_add_u32 v4, v7, 3, v4")
    a("v_xor_b32 v5, 64, v4")
    a("v_add_u32 v6, 57344, v4")
    a("v_add_u32 v7, 57344, v5")

    def trreads(t):
        bs = BF + 16 * (t & 1)
        for j in range(4):
            for q in range(2):
                a(f"ds_read_b64_tr_b16 v[{bs+4*j+2*q}:{bs+4*j+2*q+1}], v{4+j} offset:{t*2048+q*512}")

    a("s_waitcnt vmcnt(3)")
    for c in range(1, PRE):
        chunk(c)
    stamp(a, 1)
    a(f"s_waitcnt vmcnt({6*(PRE-1)})")
    a("s_barrier")
    stamp(a, 2)
    trreads(0)
    for t in range(28):
        if t + 1 < 28:
            if (t + 1) % 4 == 0:
                c = (t + 1) // 4
                issued = min(7, c - 1 + PRE)
                a(f"s_waitcnt vmcnt({6*(issued-c-1)})")
                a("s_barrier")
                trreads(t + 1)
                if issued < 7:
                    chunk(issued)
                if c == 6 and common.PFW:
                    a("s_mul_i32 s69, s70, 8")
                    a("s_add_u32 s69, s69, s52")
                    a(f"s_mul_i32 s69, s69, {9*1024}")
                    a(f"s_add_u32 s69, s69, {OFF_WDF}")
                    a("s_lshl_b32 s71, s52, 10")
                    a("s_add_u32 s71, s71, 114688")
                    a("s_mov_b32 m0, s71")
                    for i in range(9):
                        a(f"buffer_load_dwordx4 v2, s[36:39], s69 offen lds")
                        a("s_add_u32 s69, s69, 1024")
            else:
                trreads(t + 1)
            a("s_waitcnt lgkmcnt(8)")
        else:
            a("s_waitcnt lgkmcnt(0)")
        bs = BF + 16 * (t & 1)
        xf = XF + 4 * t
        for j in range(4):
            ac = f"v[{ACC+16*j}:{ACC+16*j+15}]"
            cin = "0" if t == 0 else ac
            a(f"v_mfma_f32_32x32x16_bf16 {ac}, v[{bs+4*j}:{bs+4*j+3}], v[{xf}:{xf+3}], {cin}")
    stamp(a, 3)
    a(f"s_mov_b32 s61, {f32hex(C1)}")
    a(f"s_mov_b32 s62, {f32hex(C2)}")
    a(f"s_mul_i32 s63, s55, {NSTEP}")
    a("s_lshl_b32 s64, s53, 2")
    a("s_add_u32 s63, s63, s64")
    a("s_lshl_b32 s63, s63, 10")
    a(f"s_add_u32 s63, s63, {OFF_HZ}")
    a("v_mov_b32 v15, s61")
    a("s_nop 7")
    for jj in range(2):
        for r in range(0, 16, 4):
            tm = [8, 9, 10, 11]
            gs = [ACC + 16 * jj + r + e for e in range(4)]
            us = [ACC + 16 * (2 + jj) + r + e for e in range(4)]
            for e in range(4):
                a(f"v_mul_f32 v{tm[e]}, v{gs[e]}, v{gs[e]}")
            for e in range(4):
                a(f"v_fma_f32 v{tm[e]}, v{tm[e]}, s62, v15")
            for e in range(4):
                a(f"v_mul_f32 v{tm[e]}, v{tm[e]}, v{gs[e]}")
            for e in range(4):
                a(f"v_exp_f32 v{tm[e]}, v{tm[e]}")
            for e in range(4):
                a(f"v_mul_f32 v{gs[e]}, v{gs[e]}, v{us[e]}")
            for e in range(4):
                a(f"v_add_f32 v{tm[e]}, 1.0, v{tm[e]}")
            for e in range(4):
                a(f"v_rcp_f32 v{tm[e]}, v{tm[e]}")
            a("s_nop 0")
            for e in range(4):
                a(f"v_mul_f32 v{tm[e]}, v{tm[e]}, v{gs[e]}")
            a(f"v_cvt_pk_bf16_f32 v{BF + jj*8 + r//2}, v8, v9")
            a(f"v_cvt_pk_bf16_f32 v{BF + jj*8 + r//2 + 1}, v10, v11")
        for t in range(2):
            a(f"buffer_store_dwordx4 v[{BF+jj*8+4*t}:{BF+jj*8+4*t+3}], v2, s[36:39], s63 offen offset:{(2*jj+t)*1024}")
    a("s_waitcnt vmcnt(0)")
    a.label("K1_fin")
    stamp(a, 4)
    a.label("K1_fin2")
    stamp_flush(a, 8, 52)
    a.label("K1_end")
    a("s_endpgm")
```

```python
from common import *
import common

import os
NB = int(os.environ.get('NB', '10'))
ROT = int(os.environ.get('ROT', '0'))
def rg(i, o):
    sl = i % NB
    if sl < 10:
        r = RING + 16 * sl + o
        return f'v[{r}:{r+3}]'
    r = 16 * (sl - 10) + o
    return f'a[{r}:{r+3}]'
ACC = 16
RING = 80
XR = 240
K3_LDS = 49152

def gen_k3(a):
    common.CUR = "k3"
    khead(a, "k3_kernel")
    a("s_cmp_ge_u32 s2, 224")
    a("s_cbranch_scc1 K3_end")
    a("s_load_dwordx2 s[4:5], s[0:1], 0")
    a("s_load_dwordx2 s[6:7], s[0:1], 56")
    a("s_load_dwordx2 s[8:9], s[0:1], 72")
    a("v_lshrrev_b32 v1, 6, v0")
    a("s_nop 0")
    a("v_readfirstlane_b32 s30, v1")
    a("v_and_b32 v1, 63, v0")
    a("s_and_b32 s31, s2, 7")
    a("s_lshr_b32 s32, s2, 3")
    a("s_mul_i32 s33, s32, 37")
    a("s_lshr_b32 s33, s33, 8")
    a("s_mul_i32 s34, s33, 7")
    a("s_sub_u32 s34, s32, s34")
    a("s_lshl_b32 s31, s31, 2")
    a("s_add_u32 s33, s33, s31")
    a(f"s_mul_i32 s40, s32, {ROT}")
    a("s_lshr_b32 s40, s40, 2")
    a("s_mul_i32 s41, s30, 35")
    a("s_add_u32 s40, s40, s41")
    a("s_lshl_b32 s40, s40, 10")
    a("s_waitcnt lgkmcnt(0)")
    stamp(a, 0)
    srd(a, 12, 4, S * D * 2)
    srd(a, 16, 6, S * D * 2)
    srd(a, 20, 8, WS_BYTES)
    a("v_lshlrev_b32 v2, 4, v1")
    a(f"s_mul_i32 s35, s34, {2*NSTEP*1024}")
    a(f"s_add_u32 s35, s35, {OFF_WDF}")
    a("v_add_u32 v3, s35, v2")
    a(f"v_add_u32 v4, {NSTEP*1024}, v3")
    a(f"s_mul_i32 s35, s33, {2*NSTEP*1024}")
    a(f"s_add_u32 s35, s35, {OFF_HZ}")
    a("v_add_u32 v5, s35, v2")
    a(f"v_add_u32 v6, {NSTEP*1024}, v5")
    a("v_lshrrev_b32 v9, 5, v1")
    def issue(i):
        a(f"buffer_load_dwordx4 {rg(i,0)}, v3, s[20:23], s40 offen")
        a(f"buffer_load_dwordx4 {rg(i,4)}, v4, s[20:23], s40 offen")
        a(f"buffer_load_dwordx4 {rg(i,8)}, v5, s[20:23], s40 offen")
        a(f"buffer_load_dwordx4 {rg(i,12)}, v6, s[20:23], s40 offen")
        a("s_add_u32 s40, s40, 1024")
        a(f"s_cmp_ge_u32 s40, {NSTEP*1024}")
        a("s_cselect_b32 s40, 0, s40")
    for i in range(NB):
        issue(i)
    a("v_and_b32 v10, 31, v1")
    a("v_lshlrev_b32 v10, 6, v10")
    a("s_lshl_b32 s35, s33, 1")
    a("s_and_b32 s36, s30, 1")
    a("s_add_u32 s35, s35, s36")
    a("v_add_u32 v10, s35, v10")
    a("s_movk_i32 s35, 896")
    a("v_mul_lo_u32 v10, v10, s35")
    a("s_lshl_b32 s35, s34, 7")
    a("s_lshr_b32 s36, s30, 1")
    a("s_lshl_b32 s36, s36, 6")
    a("s_add_u32 s35, s35, s36")
    a("v_add_u32 v10, s35, v10")
    a("v_lshl_add_u32 v10, v9, 3, v10")
    stamp(a, 1)
    n = 36
    XI = max(26, n - NB)
    for i in range(n):
        ahead = min(i + NB, n) - i - 1
        if i == 35:
            a("s_cmp_lt_u32 s30, 3")
            a("s_cbranch_scc1 K3_skip")
        xl = 4 if i > XI else 0
        a(f"s_waitcnt vmcnt({min(63, 4*ahead + xl)})")
        if i == 0:
            stamp(a, 2)
        for ds in range(2):
            for bs in range(2):
                tau = ds * 2 + bs
                ac = f"v[{ACC+16*tau}:{ACC+16*tau+15}]"
                a(f"v_mfma_f32_32x32x16_bf16 {ac}, {rg(i,4*ds)}, {rg(i,8+4*bs)}, {'0' if i == 0 else ac}")
        if i + NB < n:
            issue(i + NB)
        if i == XI:
            for g in range(4):
                a(f"buffer_load_dwordx2 v[{XR+2*g}:{XR+2*g+1}], v10, s[12:15], 0 offen offset:{16*g}")
    a.label("K3_skip")
    stamp(a, 3)
    a("s_waitcnt vmcnt(0)")
    for w in range(1, 4):
        a(f"s_cmp_eq_u32 s30, {w}")
        a(f"s_cbranch_scc1 K3_w{w}")
    for w in range(4):
        if w:
            a.label(f"K3_w{w}")
        a("s_nop 15")
        for tau in range(4):
            if tau == w:
                continue
            slot = (w - tau - 1) % 4
            for g in range(4):
                a(f"ds_write_b128 v2, v[{ACC+16*tau+4*g}:{ACC+16*tau+4*g+3}] offset:{tau*12288+slot*4096+g*1024}")
        a("s_waitcnt lgkmcnt(0)")
        a("s_barrier")
        for slot in range(3):
            for g in range(4):
                a(f"ds_read_b128 v[{RING+16*slot+4*g}:{RING+16*slot+4*g+3}], v2 offset:{w*12288+slot*4096+g*1024}")
        own = ACC + 16 * w
        for slot in range(3):
            a(f"s_waitcnt lgkmcnt({8-4*slot})")
            for r in range(16):
                a(f"v_add_f32 v{own+r}, v{own+r}, v{RING+16*slot+r}")
        for g in range(4):
            for p in range(2):
                x = XR + 2 * g + p
                a(f"v_lshlrev_b32 v11, 16, v{x}")
                a(f"v_and_b32 v12, 0xffff0000, v{x}")
                a(f"v_add_f32 v11, v11, v{own+4*g+2*p}")
                a(f"v_add_f32 v12, v12, v{own+4*g+2*p+1}")
                a(f"v_cvt_pk_bf16_f32 v{x}, v11, v12")
            a(f"buffer_store_dwordx2 v[{XR+2*g}:{XR+2*g+1}], v10, s[16:19], 0 offen offset:{16*g}")
        if w < 3:
            a("s_branch K3_fin")
    a.label("K3_fin")
    stamp(a, 4)
    stamp_flush(a, 5, 30)
    a.label("K3_end")
    a("s_endpgm")
```

```python
import sys
from common import *
import k0, k1, k3

def gen_t1(a):
    a.raw(".p2align 8")
    for j in range(448):
        a.raw(f".set tc{j}, 0x{bf16(np.cos(2*np.pi*j/448)):04x}")
    a.raw(""".altmacro
.macro t1emit i
.short tc\\i
.endm
.p2align 8
.type t1tab,@object
t1tab:
.set t1_ct, 0
.rept 16
.set t1_t, 0
.rept 28
.set t1_l, 0
.rept 64
.set t1_n, 32*t1_ct + (t1_l & 31)
.set t1_d, 16*t1_t + 8*(t1_l >> 5)
.rept 8
.if t1_n < 450
t1emit %((t1_d * (t1_n >> 1) + 112 * (t1_n & 1)) % 448)
.else
.short 0
.endif
.set t1_d, t1_d + 1
.endr
.set t1_l, t1_l + 1
.endr
.set t1_t, t1_t + 1
.endr
.set t1_ct, t1_ct + 1
.endr
.noaltmacro""")

def gen_gdf(a):
    a.raw(""".altmacro
.macro gdemit i
.short tc\\i
.endm
.p2align 8
.type gdftab,@object
gdftab:
.set gd_db, 0
.rept 14
.set gd_t3, 0
.rept 29
.set gd_l, 0
.rept 64
.set gd_d, 32*gd_db + (gd_l & 31)
.set gd_kk, 16*gd_t3 + 8*(gd_l >> 5)
.rept 8
.if gd_kk < 450
gdemit %((gd_d * (gd_kk >> 1) + 112 * (gd_kk & 1)) % 448)
.else
.short 0
.endif
.set gd_kk, gd_kk + 1
.endr
.set gd_l, gd_l + 1
.endr
.set gd_t3, gd_t3 + 1
.endr
.set gd_db, gd_db + 1
.endr
.noaltmacro""")

def main(out):
    import common
    if len(sys.argv) > 2:
        common.STAMP = sys.argv[2]
    hdr = open("parallel_sum__spectral_gfnet__glu_gated_geglu__prompt.s.ref").read().split("; Override")[0]
    a = Asm()
    a.raw(hdr.rstrip())
    a.raw(f"; @launch kernel=k0_kernel grid=(256,1,1) block=(512,1,1) lds={k0.K0_LDS}")
    a.raw(f"; @launch kernel=k1_kernel grid=(256,1,1) block=(512,1,1) lds={k1.K1_LDS}")
    a.raw(f"; @launch kernel=k3_kernel grid=(224,1,1) block=(256,1,1) lds={k3.K3_LDS}")
    a.raw('.amdgcn_target "amdgcn-amd-amdhsa--gfx950"')
    a.raw(".text")
    k0.gen_k0(a, "t1tab", "gdftab")
    k1.gen_k1(a)
    k3.gen_k3(a)
    a.raw('.section .rodata,"a"')
    a.raw(".p2align 6")
    a.raw(kd("k0_kernel", 256 if common.STAMP else 244, 96))
    a.raw(kd("k1_kernel", 256, 96))
    a.raw(kd("k3_kernel", 512, 96, 256))
    gen_t1(a)
    gen_gdf(a)
    k1.gen_ctab(a)
    open(out, "w").write(a.text())

if __name__ == "__main__":
    main(sys.argv[1] if len(sys.argv) > 1 else "parallel_sum__spectral_gfnet__glu_gated_geglu__prompt.s")
```

```python
from common import *
import common

K0_LDS = 32 * 912
TB = 96
ACC0 = 208
AF = 224
SJ = 24
RAW = 40
FV = 56

def gen_k0(a, tabsym, gdsym):
    common.CUR = "k0"
    khead(a, "k0_kernel")
    a("s_cmp_ge_u32 s2, 256")
    a("s_cbranch_scc1 K0_end")
    a("s_load_dwordx16 s[4:19], s[0:1], 0")
    a("s_load_dwordx4 s[20:23], s[0:1], 64")
    a("s_getpc_b64 s[58:59]")
    a(f"s_add_u32 s58, s58, {tabsym}@rel32@lo+4")
    a(f"s_addc_u32 s59, s59, {tabsym}@rel32@hi+12")
    a("s_getpc_b64 s[56:57]")
    a(f"s_add_u32 s56, s56, {gdsym}@rel32@lo+4")
    a(f"s_addc_u32 s57, s57, {gdsym}@rel32@hi+12")
    a("v_lshrrev_b32 v1, 6, v0")
    a("s_nop 0")
    a("v_readfirstlane_b32 s52, v1")
    a("v_and_b32 v1, 63, v0")
    a("s_and_b32 s53, s2, 3")
    a("s_lshr_b32 s54, s2, 2")
    a("s_lshl_b32 s55, s52, 8")
    a("s_add_u32 s55, s55, s54")
    a("s_mul_i32 s55, s55, 896")
    a("s_mov_b32 s60, 0x3f803f80")
    for i in range(16):
        a(f"v_mov_b32 v{RAW+i}, 0")
    a("v_lshlrev_b32 v2, 4, v1")
    a("s_waitcnt lgkmcnt(0)")
    stamp(a, 0)
    srd(a, 24, 4, S * D * 2)
    srd(a, 36, 22, WS_BYTES)
    srd(a, 40, 6, S * NK * 2)
    srd(a, 44, 8, S * NK * 2)
    srd(a, 48, 16, F * D * 2)
    srd(a, 28, 58, 16 * 28 * 1024)
    srd(a, 32, 56, 14 * 29 * 1024)
    a("s_mov_b32 exec_hi, 0x00ffffff")
    for r in range(4):
        a(f"buffer_load_dwordx4 v[{RAW+4*r}:{RAW+4*r+3}], v2, s[24:27], s55 offen")
        if r < 3:
            a(f"s_add_u32 s55, s55, {64*896}")
    a("s_mov_b32 exec_hi, -1")
    a("s_lshl_b32 s68, s2, 3")
    a("s_add_u32 s68, s68, s52")
    a("s_lshr_b32 s69, s68, 2")
    a("s_and_b32 s70, s68, 3")
    a("s_lshl_b32 s70, s70, 6")
    a("v_add_u32 v5, s70, v1")
    a("s_and_b32 s70, s69, 31")
    a("s_lshr_b32 s71, s69, 5")
    a("s_lshl_b32 s71, s71, 7")
    a("s_add_u32 s70, s70, s71")
    a("s_mul_i32 s70, s70, 450")
    a("v_lshlrev_b32 v6, 1, v5")
    a("v_add_u32 v6, s70, v6")
    a("s_lshr_b32 s72, s68, 4")
    a("s_and_b32 s73, s68, 15")
    a("s_min_u32 s74, s72, 111")
    a("s_min_u32 s75, s73, 13")
    a("s_lshl_b32 s76, s74, 4")
    a("v_lshrrev_b32 v7, 5, v1")
    a("v_lshlrev_b32 v16, 2, v7")
    a("v_add_u32 v16, s76, v16")
    a("s_movk_i32 s64, 896")
    a("v_mul_lo_u32 v16, v16, s64")
    a("v_and_b32 v17, 31, v1")
    a("s_lshl_b32 s76, s75, 5")
    a("v_add_u32 v17, s76, v17")
    a("v_lshl_add_u32 v16, v17, 1, v16")
    a("s_lshl_b32 s77, s53, 2")
    a("s_add_u32 s77, s77, s52")
    a(f"s_mul_i32 s77, s77, {28*1024}")
    side = []
    for j in range(4):
        side.append([f"s_mov_b32 s71, {j*32*450}", f"buffer_load_ushort v{SJ+j}, v6, s[40:43], s71 offen"])
        side.append([f"buffer_load_ushort v{SJ+4+j}, v6, s[44:47], s71 offen"])
    for i in range(8):
        off = (8 * (i >> 2) + (i & 3)) * 896
        if off < 4096:
            side.append([f"buffer_load_ushort v{SJ+8+i}, v16, s[48:51], 0 offen offset:{off}"])
        else:
            side.append([f"s_movk_i32 s71, {off}", f"buffer_load_ushort v{SJ+8+i}, v16, s[48:51], s71 offen"])
    a("s_lshl_b32 s65, s68, 10")
    side.append([f"buffer_load_dwordx4 v[20:23], v2, s[32:35], s65 offen"])
    if common.PFB:
        srd(a, 80, 12, D * F * 2)
        srd(a, 84, 14, D * F * 2)
        a("s_lshr_b32 s66, s2, 3")
        a("s_mul_i32 s66, s66, 14")
        a("s_min_u32 s67, s52, 6")
        a("s_lshl_b32 s67, s67, 1")
        a("s_add_u32 s66, s66, s67")
        a("s_mul_i32 s66, s66, 3584")
        a("s_and_b32 s67, s2, 7")
        a("s_lshr_b32 s67, s67, 1")
        a("s_mul_i32 s67, s67, 896")
        a("s_add_u32 s66, s66, s67")
        a("v_min_u32 v18, 55, v1")
        a("v_lshlrev_b32 v18, 4, v18")
        for m in range(2):
            for r in range(2):
                side.append([f"buffer_load_dwordx4 v[240:243], v18, s[{80+4*m}:{83+4*m}], s66 offen offset:{3584*r}"])
    t1l = []
    for t in range(28):
        g = [f"buffer_load_dwordx4 v[{TB+4*t}:{TB+4*t+3}], v2, s[28:31], s77 offen offset:{(t&3)*1024}"]
        if t & 3 == 3:
            g.append("s_add_u32 s77, s77, 4096")
        t1l.append(g)
    a("s_waitcnt vmcnt(0)")
    stamp(a, 1)
    main = a
    a = Asm()
    SUM = [8, 9, 10, 11]
    T2 = [12, 13, 14, 15]
    MB = [88, 90, 92, 94]
    MB2 = [89, 91, 93, 95]
    VR = [244, 245, 246, 247]
    T2P = [248, 250, 252, 254]
    R4 = range(4)
    for r in R4:
        a(f"v_dot2_f32_bf16 v{SUM[r]}, v{RAW+4*r}, s60, 0")
        a(f"v_dot2_f32_bf16 v{T2[r]}, v{RAW+4*r+1}, s60, 0")
    for r in R4:
        a(f"v_dot2_f32_bf16 v{SUM[r]}, v{RAW+4*r+2}, s60, v{SUM[r]}")
        a(f"v_dot2_f32_bf16 v{T2[r]}, v{RAW+4*r+3}, s60, v{T2[r]}")
    a("s_nop 3")
    for r in R4:
        a(f"v_add_f32 v{SUM[r]}, v{SUM[r]}, v{T2[r]}")
    def reduce4(vs, sd):
        a("s_nop 1")
        for sh in (1, 2, 4, 8):
            for v in vs:
                a(f"v_add_f32_dpp v{v}, v{v}, v{v} row_shr:{sh} row_mask:0xf bank_mask:0xf bound_ctrl:0")
        for v in vs:
            a(f"v_add_f32_dpp v{v}, v{v}, v{v} row_bcast:15 row_mask:0xa bank_mask:0xf")
        for v in vs:
            a(f"v_add_f32_dpp v{v}, v{v}, v{v} row_bcast:31 row_mask:0xc bank_mask:0xf")
        for i, v in enumerate(vs):
            a(f"v_readlane_b32 s{sd+i}, v{v}, 63")
        a("s_nop 1")
    reduce4(SUM, 61)
    for r in R4:
        a(f"v_mov_b32 v{SUM[r]}, s{61+r}")
    for r in R4:
        a(f"v_mul_f32 v{SUM[r]}, {f32hex(1.0/448)}, v{SUM[r]}")
    for r in R4:
        a(f"v_cvt_pk_bf16_f32 v{MB[r]}, v{SUM[r]}, v{SUM[r]}")
    for r in R4:
        a(f"v_and_b32 v{MB[r]}, 0xffff0000, v{MB[r]}")
    for r in R4:
        for i in range(4):
            a(f"v_lshlrev_b32 v{FV+8*r+2*i}, 16, v{RAW+4*r+i}")
            a(f"v_and_b32 v{FV+8*r+2*i+1}, 0xffff0000, v{RAW+4*r+i}")
        a(f"v_mov_b32 v{MB2[r]}, v{MB[r]}")
        for i in range(0, 8, 2):
            a(f"v_pk_add_f32 v[{FV+8*r+i}:{FV+8*r+i+1}], v[{FV+8*r+i}:{FV+8*r+i+1}], v[{MB[r]}:{MB2[r]}] neg_lo:[0,1] neg_hi:[0,1]")
        a(f"v_pk_mul_f32 v[{T2P[r]}:{T2P[r]+1}], v[{FV+8*r}:{FV+8*r+1}], v[{FV+8*r}:{FV+8*r+1}]")
        for i in range(2, 8, 2):
            a(f"v_pk_fma_f32 v[{T2P[r]}:{T2P[r]+1}], v[{FV+8*r+i}:{FV+8*r+i+1}], v[{FV+8*r+i}:{FV+8*r+i+1}], v[{T2P[r]}:{T2P[r]+1}]")
        a(f"v_add_f32 v{VR[r]}, v{T2P[r]}, v{T2P[r]+1}")
    a("v_cmp_gt_u32 vcc, 56, v1")
    a("s_nop 1")
    for r in R4:
        a(f"v_cndmask_b32 v{VR[r]}, 0, v{VR[r]}, vcc")
    reduce4(VR, 61)
    for r in R4:
        a(f"v_mov_b32 v{VR[r]}, s{61+r}")
    def each(fmt):
        for r in R4:
            a(fmt.format(v=VR[r], m=SUM[r], mb=MB[r], t=T2[r]))
    each("v_mul_f32 v{v}, " + f32hex(1.0/448) + ", v{v}")
    each("v_sub_f32 v{t}, v{m}, v{mb}")
    each("v_fma_f32 v{v}, -v{t}, v{t}, v{v}")
    each("v_max_f32 v{v}, 0, v{v}")
    each("v_cvt_pk_bf16_f32 v{v}, v{v}, v{v}")
    each("v_and_b32 v{v}, 0xffff0000, v{v}")
    each("v_add_f32 v{v}, " + f32hex(1e-5) + ", v{v}")
    each("v_cvt_pk_bf16_f32 v{v}, v{v}, v{v}")
    each("v_and_b32 v{v}, 0xffff0000, v{v}")
    each("v_sqrt_f32 v{v}, v{v}")
    a("s_nop 0")
    each("v_cvt_pk_bf16_f32 v{v}, v{v}, v{v}")
    each("v_and_b32 v{v}, 0xffff0000, v{v}")
    each("v_rcp_f32 v{t}, v{v}")
    a(f"s_mul_i32 s61, s52, {4*912}")
    a("v_add_u32 v3, s61, v2")
    for r in R4:
        for i in range(4):
            a(f"v_cvt_pk_bf16_f32 v{RAW+4*r+i}, v{FV+8*r+2*i}, v{FV+8*r+2*i+1}")
        for i in range(4):
            a(f"v_lshlrev_b32 v{FV+8*r+2*i}, 16, v{RAW+4*r+i}")
            a(f"v_and_b32 v{FV+8*r+2*i+1}, 0xffff0000, v{RAW+4*r+i}")
        a(f"v_mov_b32 v{MB[r]}, v{T2[r]}")
        a(f"v_mov_b32 v{MB2[r]}, v{T2[r]}")
        for i in range(0, 8, 2):
            a(f"v_pk_mul_f32 v[{FV+8*r+i}:{FV+8*r+i+1}], v[{FV+8*r+i}:{FV+8*r+i+1}], v[{MB[r]}:{MB2[r]}]")
        for i in range(4):
            a(f"v_cvt_pk_bf16_f32 v{RAW+4*r+i}, v{FV+8*r+2*i}, v{FV+8*r+2*i+1}")
        a("s_mov_b32 exec_hi, 0x00ffffff")
        a(f"ds_write_b128 v3, v[{RAW+4*r}:{RAW+4*r+3}] offset:{r*912}")
        a("s_mov_b32 exec_hi, -1")
    ln = [x.strip() for x in a.l]
    a = main
    def emit_ln(mem):
        step = max(1, (len(ln) - 20) // len(mem))
        mi = 0
        for i, x in enumerate(ln):
            a(x)
            if i % step == step - 1 and mi < len(mem) and not x.startswith("s_mov_b32 exec_hi, 0x00") and not x.startswith("ds_write"):
                for y in mem[mi]: a(y)
                mi += 1
        while mi < len(mem):
            for y in mem[mi]: a(y)
            mi += 1
    a("s_cmp_ge_u32 s52, 4")
    a("s_cbranch_scc1 K0_ln2")
    emit_ln(t1l + side)
    a("s_branch K0_ln3")
    a.label("K0_ln2")
    emit_ln(side)
    a.label("K0_ln3")
    a("v_and_b32 v4, 31, v1")
    a("s_movk_i32 s61, 912")
    a("v_mul_lo_u32 v4, v4, s61")
    a("v_lshl_add_u32 v4, v7, 4, v4")
    a("s_waitcnt lgkmcnt(0)")
    a("s_barrier")
    stamp(a, 2)
    a("s_cmp_ge_u32 s52, 4")
    a("s_cbranch_scc1 K0_xn")
    for t in range(3):
        a(f"ds_read_b128 v[{AF+4*t}:{AF+4*t+3}], v4 offset:{32*t}")
    a("s_waitcnt vmcnt(0)")
    acc = f"v[{ACC0}:{ACC0+15}]"
    for t in range(28):
        if t + 3 < 28:
            a(f"ds_read_b128 v[{AF+4*((t+3)&3)}:{AF+4*((t+3)&3)+3}], v4 offset:{32*(t+3)}")
        a(f"s_waitcnt lgkmcnt({min(3, 27-t)})")
        a(f"v_mfma_f32_32x32x16_bf16 {acc}, v[{AF+4*(t&3)}:{AF+4*(t&3)+3}], v[{TB+4*t}:{TB+4*t+3}], {'0' if t == 0 else acc}")
    a("v_and_b32 v3, 31, v1")
    a("v_lshlrev_b32 v3, 12, v3")
    a("v_lshl_add_u32 v3, v7, 9, v3")
    a("s_lshl_b32 s61, s53, 2")
    a("s_add_u32 s61, s61, s52")
    a("s_lshl_b32 s61, s61, 17")
    a("s_lshr_b32 s62, s54, 5")
    a("s_lshl_b32 s62, s62, 11")
    a("s_add_u32 s61, s61, s62")
    a("s_and_b32 s62, s54, 31")
    a("s_lshl_b32 s62, s62, 4")
    a("s_add_u32 s61, s61, s62")
    a(f"s_add_u32 s61, s61, {OFF_UF}")
    a("s_nop 7")
    a("s_nop 3")
    for r in range(0, 16, 2):
        a(f"v_cvt_pk_bf16_f32 v{AF + r//2}, v{ACC0+r}, v{ACC0+r+1}")
    for t in range(2):
        a(f"buffer_store_dwordx4 v[{AF+4*t}:{AF+4*t+3}], v3, s[36:39], s61 offen offset:{1024*t}")
    a("s_branch K0_side")
    a.label("K0_xn")
    a("s_mul_i32 s61, s53, 7")
    a("s_sub_u32 s62, s52, 4")
    a("s_add_u32 s61, s61, s62")
    a("s_lshl_b32 s63, s61, 5")
    a("v_add_u32 v4, s63, v4")
    a(f"ds_read_b128 v[{TB}:{TB+3}], v4")
    a(f"ds_read_b128 v[{TB+4}:{TB+7}], v4 offset:128")
    a(f"s_mul_i32 s63, s54, 28")
    a("s_add_u32 s63, s63, s61")
    a("s_lshl_b32 s63, s63, 10")
    a(f"s_add_u32 s63, s63, {OFF_XNF}")
    a("s_waitcnt vmcnt(0) lgkmcnt(0)")
    a(f"buffer_store_dwordx4 v[{TB}:{TB+3}], v2, s[36:39], s63 offen")
    a("s_cmp_ge_u32 s62, 3")
    a("s_cbranch_scc1 K0_side")
    a("s_add_u32 s63, s63, 4096")
    a(f"buffer_store_dwordx4 v[{TB+4}:{TB+7}], v2, s[36:39], s63 offen")
    a.label("K0_side")
    stamp(a, 3)
    a(f"v_lshl_or_b32 v{SJ+0}, v{SJ+1}, 16, v{SJ+0}")
    a(f"v_lshl_or_b32 v{SJ+1}, v{SJ+3}, 16, v{SJ+2}")
    a(f"v_lshl_or_b32 v{SJ+2}, v{SJ+5}, 16, v{SJ+4}")
    a(f"v_lshl_or_b32 v{SJ+3}, v{SJ+7}, 16, v{SJ+6}")
    for j in range(4):
        a(f"v_lshl_or_b32 v{SJ+4+j}, v{SJ+8+2*j+1}, 16, v{SJ+8+2*j}")
    a("v_lshlrev_b32 v3, 13, v5")
    a("s_lshl_b32 s70, s69, 4")
    a(f"s_add_u32 s70, s70, {OFF_WT}")
    a("v_cmp_gt_u32 vcc, 225, v5")
    a("s_and_saveexec_b64 s[78:79], vcc")
    a(f"buffer_store_dwordx4 v[{SJ}:{SJ+3}], v3, s[36:39], s70 offen")
    a("s_mov_b64 exec, s[78:79]")
    a("s_cmp_ge_u32 s68, 406")
    a("s_cbranch_scc1 K0_nogd")
    a("s_mul_i32 s70, s68, 2260")
    a("s_lshr_b32 s70, s70, 16")
    a(f"s_mul_i32 s71, s70, {NSTEP-29}")
    a("s_add_u32 s70, s71, s68")
    a("s_add_u32 s70, s70, 112")
    a("s_lshl_b32 s70, s70, 10")
    a(f"s_add_u32 s70, s70, {OFF_WDF}")
    a(f"buffer_store_dwordx4 v[20:23], v2, s[36:39], s70 offen")
    a.label("K0_nogd")
    a("s_cmp_ge_u32 s72, 112")
    a("s_cbranch_scc1 K0_fin")
    a("s_cmp_ge_u32 s73, 14")
    a("s_cbranch_scc1 K0_fin")
    a(f"s_mul_i32 s70, s73, {NSTEP}")
    a("s_add_u32 s70, s70, s72")
    a("s_lshl_b32 s70, s70, 10")
    a(f"s_add_u32 s70, s70, {OFF_WDF}")
    a(f"buffer_store_dwordx4 v[{SJ+4}:{SJ+7}], v2, s[36:39], s70 offen")
    a.label("K0_fin")
    stamp(a, 4)
    stamp_flush(a, 5, 52)
    a.label("K0_end")
    a("s_endpgm")
```

```python
from common import *
import common

XF = 16
ACC = 128
BF = 192
K1_LDS = 122880
PRE = 2

C1 = -2.0 * 0.7978845608028654 * 1.4426950408889634
C2 = C1 * 0.044715

FR = 16
NG = 48
AC = 64
CK = 128
WV = 208
TW = 240
TMP = 248
ZL = 57344
TWL = 20480

def cfrag32(kind, t):
    return CK + 4 * (kind * 2 + t)
def cfrag64(kind, tau, beta, t):
    return CK + 16 + 4 * (kind * 8 + tau * 4 + beta * 2 + t)

def coff(f):
    return f * 1024 if f < 4 else 8192 + f * 1024
def twoff(stage, beta, p):
    sb = stage * 2 + beta
    return 4096 + p * 1024 if sb == 0 else 20480 + sb * 8192 + p * 1024

def gen_ctab(a):
    a.raw(".p2align 8")
    a.raw(".type ctab,@object")
    a.label("ctab")
    fn = [np.cos, np.sin]
    def emit(vals):
        for i in range(0, 512, 16):
            dw = [(vals[i + 2 * j] | (vals[i + 2 * j + 1] << 16)) for j in range(8)]
            a.raw(".long " + ",".join("0x%x" % d for d in dw))
    def twtab(stage, beta):
        for p in range(8):
            dws = []
            for l in range(64):
                h = l >> 5; c = l & 31
                cs = []; ss = []
                for e in range(2):
                    r = 2 * p + e
                    g, j = r >> 2, r & 3
                    if stage == 0:
                        m = c * (32 * beta + 8 * g + 4 * h + j)
                        sg = 1.0
                    else:
                        m = (c + 32 * beta) * (8 * g + 4 * h + j)
                        sg = -1.0
                    th = 2 * np.pi * (m % 2048) / 2048
                    cs.append(np.cos(th)); ss.append(sg * np.sin(th))
                dws += [f32hex(cs[0]), f32hex(cs[1]), f32hex(ss[0]), f32hex(ss[1])]
            for i in range(0, 256, 16):
                a.raw(".long " + ",".join(dws[i:i + 16]))
    for kind in range(2):
        for t in range(2):
            vals = []
            for l in range(64):
                h = l >> 5
                for i in range(8):
                    sl = 8 * (2 * t + (i >> 2)) + 4 * h + (i & 3)
                    vals.append(bf16(fn[kind](2 * np.pi * (((l & 31) * sl) % 32) / 32)))
            emit(vals)
    twtab(0, 0)
    for kind in range(2):
        for tau in range(2):
            for beta in range(2):
                for t in range(2):
                    vals = []
                    for l in range(64):
                        h = l >> 5
                        for i in range(8):
                            sl = 32 * beta + 8 * (2 * t + (i >> 2)) + 4 * h + (i & 3)
                            vals.append(bf16(fn[kind](2 * np.pi * ((((l & 31) + 32 * tau) * sl) % 64) / 64)))
                    emit(vals)
    twtab(0, 1); twtab(1, 0); twtab(1, 1)

def fr(ri, beta, t):
    r = FR + ((ri * 2 + beta) * 2 + t) * 4
    return f"v[{r}:{r+3}]"
def ng(beta, t):
    r = NG + (beta * 2 + t) * 4
    return f"v[{r}:{r+3}]"
def acc(ri, beta):
    r = AC + (ri * 2 + beta) * 16
    return f"v[{r}:{r+15}]"
def ca(idx):
    return f"v[{idx}:{idx+3}]"

def gen_fft(a):
    a("s_lshl_b32 s21, s2, 3")
    a("s_add_u32 s21, s21, s52")
    a("s_cmp_lt_u32 s21, 225")
    a("s_cselect_b32 s26, -1, 0")
    a("s_min_u32 s21, s21, 224")
    srd(a, 8, 22, WS_BYTES)
    srd(a, 12, 58, 52 * 1024)
    a("v_lshrrev_b32 v3, 5, v1")
    a("v_lshlrev_b32 v4, 4, v1")
    a("s_lshl_b32 s27, s21, 13")
    a(f"s_add_u32 s27, s27, {OFF_UF}")
    a("s_add_u32 s28, s27, 4096")
    def uload(beta):
        for ri in range(2):
            for t in range(2):
                a(f"buffer_load_dwordx4 {fr(ri,beta,t)}, v4, s[8:11], s{27+ri} offen offset:{beta*2048+t*1024}")
    uload(0)
    a("s_lshl_b32 s29, s52, 11")
    a("s_mov_b32 m0, s29")
    for i in range(2):
        a(f"buffer_load_dwordx4 v4, s[12:15], s29 offen offset:{i*1024} lds")
    uload(1)
    a("s_mov_b32 s31, 0x80008000")
    a("s_lshl_b32 s27, s21, 13")
    a(f"s_add_u32 s27, s27, {OFF_WT}")
    a("s_add_u32 s28, s27, 4096")
    a("s_mul_i32 s29, s52, 5120")
    a("s_add_u32 s29, s29, 16384")
    a("s_mov_b32 m0, s29")
    a("s_waitcnt vmcnt(4)")
    a("s_barrier")
    stamp(a, 1)
    for f in range(4):
        a(f"ds_read_b128 {ca(CK+4*f)}, v4 offset:{coff(f)}")
    for i in range(4):
        a(f"buffer_load_dwordx4 v4, s[12:15], s29 offen offset:{i*1024} lds")
    a("s_add_u32 s29, s29, 4096")
    a("s_mov_b32 m0, s29")
    a(f"buffer_load_dwordx4 v4, s[12:15], s29 offen lds")
    for i in range(8):
        a(f"v_xor_b32 v{NG+i}, s31, v{FR+i}")
    a("s_waitcnt lgkmcnt(0)")

    def fdst(ri, beta, r):
        return FR + ((ri * 2 + beta) * 2 + (r >> 3)) * 4 + ((r & 7) >> 1)
    def ndst(beta, r):
        return NG + (beta * 2 + (r >> 3)) * 4 + ((r & 7) >> 1)
    M = "v_mfma_f32_32x32x16_bf16"
    def st1(beta):
        o = []
        for t in range(2):
            z = t == 0
            o.append(f"{M} {acc(0,beta)}, {fr(0,beta,t)}, {ca(cfrag32(0,t))}, {'0' if z else acc(0,beta)}")
            o.append(f"{M} {acc(1,beta)}, {fr(1,beta,t)}, {ca(cfrag32(0,t))}, {'0' if z else acc(1,beta)}")
            o.append(f"{M} {acc(0,beta)}, {fr(1,beta,t)}, {ca(cfrag32(1,t))}, {acc(0,beta)}")
            o.append(f"{M} {acc(1,beta)}, {ng(beta,t)}, {ca(cfrag32(1,t))}, {acc(1,beta)}")
        return o
    def st2(dl, beta):
        o = []
        for t in range(2):
            z = beta == 0 and t == 0
            o.append(f"{M} {acc(0,dl)}, {ca(cfrag64(0,dl,beta,t))}, {fr(0,beta,t)}, {'0' if z else acc(0,dl)}")
            o.append(f"{M} {acc(1,dl)}, {ca(cfrag64(0,dl,beta,t))}, {fr(1,beta,t)}, {'0' if z else acc(1,dl)}")
            o.append(f"{M} {acc(0,dl)}, {ca(cfrag64(1,dl,beta,t))}, {fr(1,beta,t)}, {acc(0,dl)}")
            o.append(f"{M} {acc(1,dl)}, {ca(cfrag64(1,dl,beta,t))}, {ng(beta,t)}, {acc(1,dl)}")
        return o
    def st3(beta, dl):
        o = []
        for t in range(2):
            z = dl == 0 and t == 0
            o.append(f"{M} {acc(0,beta)}, {fr(0,dl,t)}, {ca(cfrag64(0,beta,dl,t))}, {'0' if z else acc(0,beta)}")
            o.append(f"{M} {acc(1,beta)}, {fr(1,dl,t)}, {ca(cfrag64(0,beta,dl,t))}, {'0' if z else acc(1,beta)}")
            o.append(f"{M} {acc(0,beta)}, {ng(dl,t)}, {ca(cfrag64(1,beta,dl,t))}, {acc(0,beta)}")
            o.append(f"{M} {acc(1,beta)}, {fr(0,dl,t)}, {ca(cfrag64(1,beta,dl,t))}, {acc(1,beta)}")
        return o
    def st4(beta):
        o = []
        for t in range(2):
            z = t == 0
            o.append(f"{M} {acc(0,beta)}, {fr(0,beta,t)}, {ca(cfrag32(0,t))}, {'0' if z else acc(0,beta)}")
            o.append(f"{M} {acc(1,beta)}, {fr(1,beta,t)}, {ca(cfrag32(0,t))}, {'0' if z else acc(1,beta)}")
            o.append(f"{M} {acc(0,beta)}, {ng(beta,t)}, {ca(cfrag32(1,t))}, {acc(0,beta)}")
            o.append(f"{M} {acc(1,beta)}, {fr(0,beta,t)}, {ca(cfrag32(1,t))}, {acc(1,beta)}")
        return o
    st = {"n": 0, "idx": {}}
    def emit(x):
        if isinstance(x, str):
            a(x)
            if x.startswith("ds_"):
                st["n"] += 1
        elif x[0] == "rd":
            a(x[2]); st["idx"][x[1]] = st["n"]; st["n"] += 1
        elif x[0] == "wt":
            a(f"s_waitcnt lgkmcnt({min(15, st['n'] - st['idx'][x[1]] - 1)})")
    def rd_tw(stage, beta, p):
        return ("rd", ("tw", stage, beta, p), f"ds_read_b128 v[{WV+4*p}:{WV+4*p+3}], v4 offset:{twoff(stage,beta,p)}")
    def rd_w(i):
        return ("rd", ("w", i), f"ds_read_b128 v[{WV+4*i}:{WV+4*i+3}], v6 offset:{i*1024}")
    def tw(stage, beta, nxt):
        negri = 0 if stage == 0 else 1
        gs = []
        for p in range(8):
            g = [("wt", ("tw", stage, beta, p))]
            r = 2 * p
            R = AC + beta * 16 + r
            I = AC + (2 + beta) * 16 + r
            c = WV + 4 * p; s = c + 2
            u = TMP + 4 * (p & 1); t = u + 2
            for e in range(2):
                g.append(f"v_mul_f32 v{u+e}, v{I+e}, v{c+e}")
                g.append(f"v_mul_f32 v{t+e}, v{R+e}, v{c+e}")
            for e in range(2):
                g.append(f"v_fma_f32 v{u+e}, -v{R+e}, v{s+e}, v{u+e}")
                g.append(f"v_fmac_f32 v{t+e}, v{I+e}, v{s+e}")
            if nxt is not None:
                g.append(nxt(p))
            g.append(f"v_cvt_pk_bf16_f32 v{fdst(1,beta,r)}, v{u}, v{u+1}")
            g.append(f"v_cvt_pk_bf16_f32 v{fdst(0,beta,r)}, v{t}, v{t+1}")
            x = t if negri == 0 else u
            g.append(f"v_cvt_pk_bf16_f32 v{ndst(beta,r)}, -v{x}, -v{x+1}")
            gs.append(g)
        return gs
    def wm(dl):
        gs = []
        for r in range(0, 16, 2):
            g, jp = r >> 2, (r & 3) >> 1
            R = AC + dl * 16 + r
            I = AC + (2 + dl) * 16 + r
            wr = WV + dl * 16 + 4 * g + jp
            wi = wr + 2
            c = TW + 4 * ((r >> 1) & 1); s = c + 2
            u = TMP + 4 * ((r >> 1) & 1); t = u + 2
            gg = [("wt", ("w", dl * 4 + g)),
                f"v_lshlrev_b32 v{c}, 16, v{wr}",
                f"v_and_b32 v{c+1}, 0xffff0000, v{wr}",
                f"v_lshlrev_b32 v{s}, 16, v{wi}",
                f"v_and_b32 v{s+1}, 0xffff0000, v{wi}"]
            if jp == 1:
                gg.append(rd_tw(1, 0, dl * 4 + g))
            gg += [
                f"v_mul_f32 v{u}, v{I}, v{c}", f"v_mul_f32 v{t}, v{R}, v{c}",
                f"v_mul_f32 v{u+1}, v{I+1}, v{c+1}", f"v_mul_f32 v{t+1}, v{R+1}, v{c+1}",
                f"v_fmac_f32 v{u}, v{R}, v{s}", f"v_fma_f32 v{t}, -v{I}, v{s}, v{t}",
                f"v_fmac_f32 v{u+1}, v{R+1}, v{s+1}", f"v_fma_f32 v{t+1}, -v{I+1}, v{s+1}, v{t+1}",
                f"v_cvt_pk_bf16_f32 v{fdst(1,dl,r)}, v{u}, v{u+1}",
                f"v_cvt_pk_bf16_f32 v{fdst(0,dl,r)}, v{t}, v{t+1}",
                f"v_cvt_pk_bf16_f32 v{ndst(dl,r)}, -v{u}, -v{u+1}"]
            gs.append(gg)
        return gs
    def fin(beta):
        gs = []
        for r0 in range(0, 16, 2):
            g_ = []
            for r in (r0, r0 + 1):
                g, j = r >> 2, r & 3
                R = AC + beta * 16 + r
                I = AC + (2 + beta) * 16 + r
                g_ += [f"v_cvt_pk_bf16_f32 v{R}, v{R}, v{I}",
                       f"ds_write_b32 v2, v{R} offset:{(32*beta+8*g+j)*128}"]
            gs.append(g_)
        return gs
    def mix(ms, gs=None):
        if gs is None:
            for m in ms: a(m)
            return
        gi = 0
        for i, m in enumerate(ms):
            a(m)
            if i >= 1:
                n = 1 if i < len(ms) - 1 else len(gs) - gi
                if i == 1: n = 2
                for _ in range(n):
                    if gi < len(gs):
                        for x in gs[gi]: emit(x)
                        gi += 1
        a("s_nop 1")

    a("s_lshl_b32 s29, s52, 13")
    a(f"s_add_u32 s29, s29, {ZL}")
    a("v_add_u32 v6, s29, v4")
    for i, m in enumerate(st1(0)):
        a(m)
        emit(rd_tw(0, 0, i))
        if i % 4 == 0:
            a("s_mov_b32 m0, s29")
            a("s_add_u32 s29, s29, 4096")
        a(f"buffer_load_dwordx4 v4, s[8:11], s{27+(i>>2)} offen offset:{(i&3)*1024} lds")
    a("s_waitcnt vmcnt(13)")
    for i in range(8, 16):
        a(f"v_xor_b32 v{NG+i}, s31, v{FR+i}")
    a("s_nop 1")
    stamp(a, 2)
    if common.FFT1:
        a("s_cmp_ge_u32 s52, 4")
        a("s_cbranch_scc1 F_skipA")
    mix(st1(1), tw(0, 0, None))
    a.label("F_skipA")
    a("s_waitcnt vmcnt(8)")
    a("s_barrier")
    stamp(a, 3)
    first4 = [4, 5, 12, 13]
    for f in first4:
        emit(("rd", ("c", f), f"ds_read_b128 {ca(CK+4*f)}, v4 offset:{coff(f)}"))
    for p in range(8):
        emit(rd_tw(0, 1, p))
    rest = [f for f in range(4, 20) if f not in first4]
    for f in rest:
        emit(("rd", ("c", f), f"ds_read_b128 {ca(CK+4*f)}, v4 offset:{coff(f)}"))
    emit(("wt", ("c", 13)))
    if common.FFT1:
        a("s_cmp_ge_u32 s52, 4")
        a("s_cbranch_scc1 F_skipB")
    mix(st2(0, 0), tw(0, 1, None))
    emit(("wt", ("c", rest[-1])))
    mix(st2(0, 1))
    s4 = st2(1, 0)
    mix(s4[:4])
    a("s_waitcnt vmcnt(0)")
    for p in range(8):
        emit(rd_w(p))
    mix(s4[4:])
    stamp(a, 4)
    mix(st2(1, 1), wm(0))
    mix(st3(0, 0), wm(1))
    mix(st3(0, 1) + st3(1, 0))
    stamp(a, 5)
    mix(st3(1, 1), tw(1, 0, lambda p: rd_tw(1, 1, p)))
    mix(st4(0), tw(1, 1, None))
    a("v_and_b32 v2, 31, v1")
    a("v_lshlrev_b32 v2, 2, v2")
    a("v_lshl_add_u32 v2, v3, 9, v2")
    a("s_lshl_b32 s28, s52, 13")
    a(f"s_add_u32 s28, s28, {ZL}")
    a("v_add_u32 v2, s28, v2")
    mix(st4(1), fin(0))
    stamp(a, 6)
    a("v_and_b32 v5, 31, v1")
    a("v_lshlrev_b32 v5, 2, v5")
    a("v_lshl_add_u32 v5, v3, 15, v5")
    a("s_lshl_b32 s28, s52, 7")
    a(f"s_add_u32 s28, s28, {ZL}")
    a("v_add_u32 v5, s28, v5")
    a(f"s_mul_i32 s28, s52, {NSTEP}")
    a("s_add_u32 s28, s28, s2")
    a("s_add_u32 s28, s28, 112")
    a("s_lshl_b32 s28, s28, 10")
    a(f"s_add_u32 s28, s28, {OFF_HZ}")
    a("s_nop 7")
    for g in fin(1):
        for x in g: a(x)
    a.label("F_skipB")
    a("s_waitcnt lgkmcnt(0)")
    a("s_barrier")
    for i in range(8):
        for q in range(4):
            a(f"ds_read_b32 v{FR+4*i+q}, v5 offset:{q*8192+i*1024}")
    for i in range(8):
        a(f"s_waitcnt lgkmcnt({min(28-4*i, 15)})")
        a(f"buffer_store_dwordx4 v[{FR+4*i}:{FR+4*i+3}], v4, s[8:11], s28 offen")
        a(f"s_add_u32 s28, s28, {8*NSTEP*1024}")

def gen_k1(a):
    common.CUR = "k1"
    khead(a, "k1_kernel")
    a("s_cmp_ge_u32 s2, 256")
    a("s_cbranch_scc1 K1_end")
    a("s_load_dwordx4 s[12:15], s[0:1], 32")
    a("s_load_dwordx2 s[22:23], s[0:1], 72")
    a("s_getpc_b64 s[58:59]")
    a(f"s_add_u32 s58, s58, ctab@rel32@lo+4")
    a(f"s_addc_u32 s59, s59, ctab@rel32@hi+12")
    a("v_lshrrev_b32 v1, 6, v0")
    a("s_nop 0")
    a("v_readfirstlane_b32 s52, v1")
    a("v_and_b32 v1, 63, v0")
    a("s_cmp_ge_u32 s2, 32")
    a("s_cbranch_scc1 K1_gemm")
    a("s_cmp_ge_u32 s2, 29")
    a("s_cbranch_scc1 K1_end")
    a("s_waitcnt lgkmcnt(0)")
    stamp(a, 0)
    gen_fft(a)
    stamp(a, 7)
    a("s_branch K1_fin2")
    a.label("K1_gemm")
    a("s_sub_u32 s57, s2, 32")
    a("s_lshr_b32 s54, s57, 3")
    a("s_mov_b32 s70, s54")
    a("s_and_b32 s57, s57, 7")
    if common.MAPX:
        a("s_mov_b32 s53, s54")
        a("s_mov_b32 s54, s57")
    else:
        a("s_lshr_b32 s53, s57, 1")
        a("s_mul_i32 s53, s53, 7")
        a("s_lshr_b32 s61, s54, 2")
        a("s_add_u32 s53, s53, s61")
        a("s_and_b32 s54, s54, 3")
        a("s_and_b32 s57, s57, 1")
        a("s_lshl_b32 s57, s57, 2")
        a("s_add_u32 s54, s54, s57")
    a("s_lshl_b32 s55, s54, 3")
    a("s_add_u32 s55, s55, s52")
    a("s_waitcnt lgkmcnt(0)")
    stamp(a, 0)
    srd(a, 36, 22, WS_BYTES)
    a("s_and_b32 s62, s52, 1")
    a("s_cmp_eq_u32 s62, 0")
    a("s_cselect_b32 s28, s12, s14")
    a("s_cselect_b32 s29, s13, s15")
    a("s_and_b32 s29, s29, 0xffff")
    a(f"s_mov_b32 s30, {D*F*2}")
    a("s_mov_b32 s31, 0x00020000")
    a("s_lshl_b32 s57, s53, 7")
    a("v_lshlrev_b32 v2, 4, v1")
    a(f"s_mul_i32 s68, s55, {28*1024}")
    a(f"s_add_u32 s68, s68, {OFF_XNF}")
    a("v_lshrrev_b32 v3, 3, v1")
    a("v_and_b32 v4, 7, v1")
    a("v_bfe_u32 v5, v3, 1, 1")
    a("v_lshlrev_b32 v5, 2, v5")
    a("v_xor_b32 v4, v4, v5")
    a("s_lshr_b32 s63, s52, 1")
    a("s_lshl_b32 s64, s63, 3")
    a("v_add_u32 v3, s64, v3")
    a("s_movk_i32 s56, 3584")
    a("v_mul_lo_u32 v3, v3, s56")
    a("v_lshl_add_u32 v3, v4, 4, v3")
    a("v_add_u32 v3, s57, v3")
    a("s_mul_i32 s65, s62, 57344")
    a("s_lshl_b32 s64, s63, 10")
    a("s_add_u32 s65, s65, s64")
    a("s_lshr_b32 s72, s70, 2")
    a("s_and_b32 s73, s70, 3")
    a("s_lshl_b32 s73, s73, 1")
    a("s_add_u32 s72, s72, s73")
    a("s_cmp_ge_u32 s72, 7")
    a("s_cselect_b32 s73, 7, 0")
    a("s_sub_u32 s72, s72, s73")
    a("s_mov_b32 s72, 0")
    a(f"s_mul_i32 s67, s72, {2*3584*32}")
    a("s_lshl_b32 s72, s72, 12")
    a("s_add_u32 s68, s68, s72")
    vm = {"n": 0, "last": {}}
    def chunk_ops(c):
        ops = []
        for i in range(2):
            ops.append(["s_mov_b32 m0, s65", "s_add_u32 s65, s65, 4096",
                        "buffer_load_dwordx4 v3, s[28:31], s67 offen lds", f"s_add_u32 s67, s67, {3584*32}"])
        for t in range(4 * c, 4 * c + 4):
            o = [f"buffer_load_dwordx4 v[{XF+4*t}:{XF+4*t+3}], v2, s[36:39], s68 offen offset:{(t&3)*1024}"]
            if t & 3 == 3:
                o.append("s_add_u32 s68, s68, 4096")
            ops.append(o)
        return [(c, o) for o in ops]
    def vissue(co):
        c, o = co
        for x in o: a(x)
        vm["n"] += 1
        vm["last"][c] = vm["n"]
    def vwait(c):
        a(f"s_waitcnt vmcnt({vm['n'] - vm['last'][c]})")
    def chunk(c):
        for co in chunk_ops(c): vissue(co)
    chunk(0)
    a("v_lshrrev_b32 v4, 5, v1")
    a("v_bfe_u32 v5, v1, 2, 2")
    a("v_lshl_add_u32 v4, v4, 3, v5")
    a("v_lshlrev_b32 v4, 7, v4")
    a("v_bfe_u32 v6, v1, 4, 1")
    a("v_bfe_u32 v7, v1, 1, 1")
    a("v_lshl_add_u32 v6, v6, 1, v7")
    a("v_lshrrev_b32 v7, 1, v5")
    a("v_lshlrev_b32 v7, 2, v7")
    a("v_xor_b32 v6, v6, v7")
    a("v_lshl_add_u32 v4, v6, 4, v4")
    a("v_and_b32 v7, 1, v1")
    a("v_lshl_add_u32 v4, v7, 3, v4")
    a("v_xor_b32 v5, 64, v4")
    a("v_add_u32 v6, 57344, v4")
    a("v_add_u32 v7, 57344, v5")

    def trreads(t):
        bs = BF + 16 * (t & 1)
        for j in range(4):
            for q in range(2):
                a(f"ds_read_b64_tr_b16 v[{bs+4*j+2*q}:{bs+4*j+2*q+1}], v{4+j} offset:{t*2048+q*512}")

    a("s_waitcnt vmcnt(3)")
    for c in range(1, PRE):
        chunk(c)
    stamp(a, 1)
    vwait(0)
    a("s_barrier")
    stamp(a, 2)
    trreads(0)
    pend = []
    for t in range(28):
        if t % 4 == 0 and t // 4 + PRE < 7:
            pend = chunk_ops(t // 4 + PRE)
        if t + 1 < 28:
            if (t + 1) % 4 == 0:
                vwait((t + 1) // 4)
                a("s_barrier")
            trreads(t + 1)
            a("s_waitcnt lgkmcnt(8)")
        else:
            a("s_waitcnt lgkmcnt(0)")
        bs = BF + 16 * (t & 1)
        xf = XF + 4 * t
        for j in range(4):
            ac = f"v[{ACC+16*j}:{ACC+16*j+15}]"
            cin = "0" if t == 0 else ac
            a(f"v_mfma_f32_32x32x16_bf16 {ac}, v[{bs+4*j}:{bs+4*j+3}], v[{xf}:{xf+3}], {cin}")
            if pend and (j == 1 or (j == 3 and t % 4 < 2)):
                vissue(pend.pop(0))
    stamp(a, 3)
    a(f"s_mov_b32 s61, {f32hex(C1)}")
    a(f"s_mov_b32 s62, {f32hex(C2)}")
    a(f"s_mul_i32 s63, s55, {NSTEP}")
    a("s_lshl_b32 s64, s53, 2")
    a("s_add_u32 s63, s63, s64")
    a("s_lshl_b32 s63, s63, 10")
    a(f"s_add_u32 s63, s63, {OFF_HZ}")
    a("v_mov_b32 v15, s61")
    a("s_nop 7")
    for jj in range(2):
        for r in range(0, 16, 4):
            tm = [8, 9, 10, 11]
            gs = [ACC + 16 * jj + r + e for e in range(4)]
            us = [ACC + 16 * (2 + jj) + r + e for e in range(4)]
            for e in range(4):
                a(f"v_mul_f32 v{tm[e]}, v{gs[e]}, v{gs[e]}")
            for e in range(4):
                a(f"v_fma_f32 v{tm[e]}, v{tm[e]}, s62, v15")
            for e in range(4):
                a(f"v_mul_f32 v{tm[e]}, v{tm[e]}, v{gs[e]}")
            for e in range(4):
                a(f"v_exp_f32 v{tm[e]}, v{tm[e]}")
            for e in range(4):
                a(f"v_mul_f32 v{gs[e]}, v{gs[e]}, v{us[e]}")
            for e in range(4):
                a(f"v_add_f32 v{tm[e]}, 1.0, v{tm[e]}")
            for e in range(4):
                a(f"v_rcp_f32 v{tm[e]}, v{tm[e]}")
            a("s_nop 0")
            for e in range(4):
                a(f"v_mul_f32 v{tm[e]}, v{tm[e]}, v{gs[e]}")
            a(f"v_cvt_pk_bf16_f32 v{BF + jj*8 + r//2}, v8, v9")
            a(f"v_cvt_pk_bf16_f32 v{BF + jj*8 + r//2 + 1}, v10, v11")
        for t in range(2):
            a(f"buffer_store_dwordx4 v[{BF+jj*8+4*t}:{BF+jj*8+4*t+3}], v2, s[36:39], s63 offen offset:{(2*jj+t)*1024}")
    a.label("K1_fin")
    stamp(a, 4)
    a.label("K1_fin2")
    stamp_flush(a, 8, 52)
    a.label("K1_end")
    a("s_endpgm")
```

```python
import sys
from common import *
import k0, k1, k3

def gen_t1(a):
    a.raw(".p2align 8")
    for j in range(448):
        a.raw(f".set tc{j}, 0x{bf16(np.cos(2*np.pi*j/448)):04x}")
    a.raw(""".altmacro
.macro t1emit i
.short tc\\i
.endm
.p2align 8
.type t1tab,@object
t1tab:
.set t1_ct, 0
.rept 16
.set t1_t, 0
.rept 28
.set t1_l, 0
.rept 64
.set t1_n, 32*t1_ct + (t1_l & 31)
.set t1_d, 16*t1_t + 8*(t1_l >> 5)
.rept 8
.if t1_n < 450
t1emit %((t1_d * (t1_n >> 1) + 112 * (t1_n & 1)) % 448)
.else
.short 0
.endif
.set t1_d, t1_d + 1
.endr
.set t1_l, t1_l + 1
.endr
.set t1_t, t1_t + 1
.endr
.set t1_ct, t1_ct + 1
.endr
.noaltmacro""")

def gen_gdf(a):
    for j in range(448):
        a.raw(f".set tg2_{j}, 0x{bf16(np.cos(2*np.pi*j/448)*2.0/(448*2048)):04x}")
        a.raw(f".set tg1_{j}, 0x{bf16(np.cos(2*np.pi*j/448)*1.0/(448*2048)):04x}")
    a.raw(""".altmacro
.macro gdemit i
.short tg2_\\i
.endm
.macro gdemit1 i
.short tg1_\\i
.endm
.p2align 8
.type gdftab,@object
gdftab:
.set gd_db, 0
.rept 14
.set gd_t3, 0
.rept 29
.set gd_l, 0
.rept 64
.set gd_d, 32*gd_db + (gd_l & 31)
.set gd_kk, 16*gd_t3 + 8*(gd_l >> 5)
.rept 8
.if (gd_kk < 2) || ((gd_kk >= 448) && (gd_kk < 450))
gdemit1 %((gd_d * (gd_kk >> 1) + 112 * (gd_kk & 1)) % 448)
.elseif gd_kk < 450
gdemit %((gd_d * (gd_kk >> 1) + 112 * (gd_kk & 1)) % 448)
.else
.short 0
.endif
.set gd_kk, gd_kk + 1
.endr
.set gd_l, gd_l + 1
.endr
.set gd_t3, gd_t3 + 1
.endr
.set gd_db, gd_db + 1
.endr
.noaltmacro""")

def main(out):
    import common
    if len(sys.argv) > 2:
        common.STAMP = sys.argv[2]
    hdr = open("parallel_sum__spectral_gfnet__glu_gated_geglu__prompt.s.ref").read().split("; Override")[0]
    a = Asm()
    a.raw(hdr.rstrip())
    a.raw(f"; @launch kernel=k0_kernel grid=(256,1,1) block=(512,1,1) lds={k0.K0_LDS}")
    a.raw(f"; @launch kernel=k1_kernel grid=(256,1,1) block=(512,1,1) lds={k1.K1_LDS}")
    a.raw(f"; @launch kernel=k3_kernel grid=(224,1,1) block=(256,1,1) lds={k3.K3_LDS}")
    a.raw('.amdgcn_target "amdgcn-amd-amdhsa--gfx950"')
    a.raw(".text")
    k0.gen_k0(a, "t1tab", "gdftab")
    k1.gen_k1(a)
    k3.gen_k3(a, "gdftab")
    a.raw('.section .rodata,"a"')
    a.raw(".p2align 6")
    a.raw(kd("k0_kernel", 256, 96))
    a.raw(kd("k1_kernel", 256, 96))
    a.raw(kd("k3_kernel", 256, 96))
    gen_t1(a)
    gen_gdf(a)
    k1.gen_ctab(a)
    open(out, "w").write(a.text())

if __name__ == "__main__":
    main(sys.argv[1] if len(sys.argv) > 1 else "parallel_sum__spectral_gfnet__glu_gated_geglu__prompt.s")
```

```python
from common import *
import common

K0_LDS = 32 * 912
TB = 96
ACC0 = 208
AF = 224
SJ = 24
RAW = 40
FV = 56

def gen_k0(a, tabsym, gdsym):
    common.CUR = "k0"
    khead(a, "k0_kernel")
    a("s_cmp_ge_u32 s2, 256")
    a("s_cbranch_scc1 K0_end")
    a("s_load_dwordx16 s[4:19], s[0:1], 0")
    a("s_load_dwordx4 s[20:23], s[0:1], 64")
    a("s_getpc_b64 s[58:59]")
    a(f"s_add_u32 s58, s58, {tabsym}@rel32@lo+4")
    a(f"s_addc_u32 s59, s59, {tabsym}@rel32@hi+12")
    a("s_getpc_b64 s[56:57]")
    a(f"s_add_u32 s56, s56, {gdsym}@rel32@lo+4")
    a(f"s_addc_u32 s57, s57, {gdsym}@rel32@hi+12")
    a("v_lshrrev_b32 v1, 6, v0")
    a("s_nop 0")
    a("v_readfirstlane_b32 s52, v1")
    a("v_and_b32 v1, 63, v0")
    a("s_and_b32 s53, s2, 3")
    a("s_lshr_b32 s54, s2, 2")
    a("s_lshl_b32 s55, s52, 8")
    a("s_add_u32 s55, s55, s54")
    a("s_mul_i32 s55, s55, 896")
    a("s_mov_b32 s60, 0x3f803f80")
    for i in range(16):
        a(f"v_mov_b32 v{RAW+i}, 0")
    a("v_lshlrev_b32 v2, 4, v1")
    a("s_waitcnt lgkmcnt(0)")
    stamp(a, 0)
    srd(a, 24, 4, S * D * 2)
    srd(a, 36, 22, WS_BYTES)
    srd(a, 40, 6, S * NK * 2)
    srd(a, 44, 8, S * NK * 2)
    srd(a, 48, 16, F * D * 2)
    srd(a, 28, 58, 16 * 28 * 1024)
    srd(a, 32, 56, 14 * 29 * 1024)
    a("s_mov_b32 exec_hi, 0x00ffffff")
    for r in range(4):
        a(f"buffer_load_dwordx4 v[{RAW+4*r}:{RAW+4*r+3}], v2, s[24:27], s55 offen")
        if r < 3:
            a(f"s_add_u32 s55, s55, {64*896}")
    a("s_mov_b32 exec_hi, -1")
    a("s_lshl_b32 s68, s2, 3")
    a("s_add_u32 s68, s68, s52")
    a("s_lshr_b32 s69, s68, 2")
    a("s_and_b32 s70, s68, 3")
    a("s_lshl_b32 s70, s70, 6")
    a("v_add_u32 v5, s70, v1")
    a("s_and_b32 s70, s69, 31")
    a("s_lshr_b32 s71, s69, 5")
    a("s_lshl_b32 s71, s71, 7")
    a("s_add_u32 s70, s70, s71")
    a("s_mul_i32 s70, s70, 450")
    a("v_lshlrev_b32 v6, 1, v5")
    a("v_add_u32 v6, s70, v6")
    a("s_lshr_b32 s72, s68, 4")
    a("s_and_b32 s73, s68, 15")
    a("s_min_u32 s74, s72, 111")
    a("s_min_u32 s75, s73, 13")
    a("s_lshl_b32 s76, s74, 4")
    a("v_lshrrev_b32 v7, 5, v1")
    a("v_lshlrev_b32 v16, 2, v7")
    a("v_add_u32 v16, s76, v16")
    a("s_movk_i32 s64, 896")
    a("v_mul_lo_u32 v16, v16, s64")
    a("v_and_b32 v17, 31, v1")
    a("s_lshl_b32 s76, s75, 5")
    a("v_add_u32 v17, s76, v17")
    a("v_lshl_add_u32 v16, v17, 1, v16")
    a("s_lshl_b32 s77, s53, 2")
    a("s_add_u32 s77, s77, s52")
    a(f"s_mul_i32 s77, s77, {28*1024}")
    side = []
    for j in range(4):
        side.append([f"s_mov_b32 s71, {j*32*450}", f"buffer_load_ushort v{SJ+j}, v6, s[40:43], s71 offen"])
        side.append([f"buffer_load_ushort v{SJ+4+j}, v6, s[44:47], s71 offen"])
    if common.PFB:
        srd(a, 80, 12, D * F * 2)
        srd(a, 84, 14, D * F * 2)
        a("s_lshr_b32 s66, s2, 3")
        a("s_mul_i32 s66, s66, 14")
        a("s_min_u32 s67, s52, 6")
        a("s_lshl_b32 s67, s67, 1")
        a("s_add_u32 s66, s66, s67")
        a("s_mul_i32 s66, s66, 3584")
        a("s_and_b32 s67, s2, 7")
        a("s_lshr_b32 s67, s67, 1")
        a("s_mul_i32 s67, s67, 896")
        a("s_add_u32 s66, s66, s67")
        a("v_min_u32 v18, 55, v1")
        a("v_lshlrev_b32 v18, 4, v18")
        for m in range(2):
            for r in range(2):
                side.append([f"buffer_load_dwordx4 v[240:243], v18, s[{80+4*m}:{83+4*m}], s66 offen offset:{3584*r}"])
    t1l = []
    for t in range(28):
        g = [f"buffer_load_dwordx4 v[{TB+4*t}:{TB+4*t+3}], v2, s[28:31], s77 offen offset:{(t&3)*1024}"]
        if t & 3 == 3:
            g.append("s_add_u32 s77, s77, 4096")
        t1l.append(g)
    a("s_waitcnt vmcnt(0)")
    stamp(a, 1)
    main = a
    a = Asm()
    SUM = [8, 9, 10, 11]
    T2 = [12, 13, 14, 15]
    MB = [88, 90, 92, 94]
    MB2 = [89, 91, 93, 95]
    VR = [244, 245, 246, 247]
    T2P = [248, 250, 252, 254]
    R4 = range(4)
    for r in R4:
        a(f"v_dot2_f32_bf16 v{SUM[r]}, v{RAW+4*r}, s60, 0")
        a(f"v_dot2_f32_bf16 v{T2[r]}, v{RAW+4*r+1}, s60, 0")
    for r in R4:
        a(f"v_dot2_f32_bf16 v{SUM[r]}, v{RAW+4*r+2}, s60, v{SUM[r]}")
        a(f"v_dot2_f32_bf16 v{T2[r]}, v{RAW+4*r+3}, s60, v{T2[r]}")
    a("s_nop 3")
    for r in R4:
        a(f"v_add_f32 v{SUM[r]}, v{SUM[r]}, v{T2[r]}")
    def reduce4(vs, sd):
        a("s_nop 1")
        for sh in (1, 2, 4, 8):
            for v in vs:
                a(f"v_add_f32_dpp v{v}, v{v}, v{v} row_shr:{sh} row_mask:0xf bank_mask:0xf bound_ctrl:0")
        for v in vs:
            a(f"v_add_f32_dpp v{v}, v{v}, v{v} row_bcast:15 row_mask:0xa bank_mask:0xf")
        for v in vs:
            a(f"v_add_f32_dpp v{v}, v{v}, v{v} row_bcast:31 row_mask:0xc bank_mask:0xf")
        for i, v in enumerate(vs):
            a(f"v_readlane_b32 s{sd+i}, v{v}, 63")
        a("s_nop 1")
    reduce4(SUM, 61)
    for r in R4:
        a(f"v_mov_b32 v{SUM[r]}, s{61+r}")
    for r in R4:
        a(f"v_mul_f32 v{SUM[r]}, {f32hex(1.0/448)}, v{SUM[r]}")
    for r in R4:
        a(f"v_cvt_pk_bf16_f32 v{MB[r]}, v{SUM[r]}, v{SUM[r]}")
    for r in R4:
        a(f"v_and_b32 v{MB[r]}, 0xffff0000, v{MB[r]}")
    for r in R4:
        for i in range(4):
            a(f"v_lshlrev_b32 v{FV+8*r+2*i}, 16, v{RAW+4*r+i}")
            a(f"v_and_b32 v{FV+8*r+2*i+1}, 0xffff0000, v{RAW+4*r+i}")
        a(f"v_mov_b32 v{MB2[r]}, v{MB[r]}")
        for i in range(0, 8, 2):
            a(f"v_pk_add_f32 v[{FV+8*r+i}:{FV+8*r+i+1}], v[{FV+8*r+i}:{FV+8*r+i+1}], v[{MB[r]}:{MB2[r]}] neg_lo:[0,1] neg_hi:[0,1]")
        a(f"v_pk_mul_f32 v[{T2P[r]}:{T2P[r]+1}], v[{FV+8*r}:{FV+8*r+1}], v[{FV+8*r}:{FV+8*r+1}]")
        for i in range(2, 8, 2):
            a(f"v_pk_fma_f32 v[{T2P[r]}:{T2P[r]+1}], v[{FV+8*r+i}:{FV+8*r+i+1}], v[{FV+8*r+i}:{FV+8*r+i+1}], v[{T2P[r]}:{T2P[r]+1}]")
        a(f"v_add_f32 v{VR[r]}, v{T2P[r]}, v{T2P[r]+1}")
    a("v_cmp_gt_u32 vcc, 56, v1")
    a("s_nop 1")
    for r in R4:
        a(f"v_cndmask_b32 v{VR[r]}, 0, v{VR[r]}, vcc")
    reduce4(VR, 61)
    for r in R4:
        a(f"v_mov_b32 v{VR[r]}, s{61+r}")
    def each(fmt):
        for r in R4:
            a(fmt.format(v=VR[r], m=SUM[r], mb=MB[r], t=T2[r]))
    each("v_mul_f32 v{v}, " + f32hex(1.0/448) + ", v{v}")
    each("v_sub_f32 v{t}, v{m}, v{mb}")
    each("v_fma_f32 v{v}, -v{t}, v{t}, v{v}")
    each("v_max_f32 v{v}, 0, v{v}")
    each("v_cvt_pk_bf16_f32 v{v}, v{v}, v{v}")
    each("v_and_b32 v{v}, 0xffff0000, v{v}")
    each("v_add_f32 v{v}, " + f32hex(1e-5) + ", v{v}")
    each("v_cvt_pk_bf16_f32 v{v}, v{v}, v{v}")
    each("v_and_b32 v{v}, 0xffff0000, v{v}")
    each("v_sqrt_f32 v{v}, v{v}")
    a("s_nop 0")
    each("v_cvt_pk_bf16_f32 v{v}, v{v}, v{v}")
    each("v_and_b32 v{v}, 0xffff0000, v{v}")
    each("v_rcp_f32 v{t}, v{v}")
    a(f"s_mul_i32 s61, s52, {4*912}")
    a("v_add_u32 v3, s61, v2")
    for r in R4:
        for i in range(4):
            a(f"v_cvt_pk_bf16_f32 v{RAW+4*r+i}, v{FV+8*r+2*i}, v{FV+8*r+2*i+1}")
        for i in range(4):
            a(f"v_lshlrev_b32 v{FV+8*r+2*i}, 16, v{RAW+4*r+i}")
            a(f"v_and_b32 v{FV+8*r+2*i+1}, 0xffff0000, v{RAW+4*r+i}")
        a(f"v_mov_b32 v{MB[r]}, v{T2[r]}")
        a(f"v_mov_b32 v{MB2[r]}, v{T2[r]}")
        for i in range(0, 8, 2):
            a(f"v_pk_mul_f32 v[{FV+8*r+i}:{FV+8*r+i+1}], v[{FV+8*r+i}:{FV+8*r+i+1}], v[{MB[r]}:{MB2[r]}]")
        for i in range(4):
            a(f"v_cvt_pk_bf16_f32 v{RAW+4*r+i}, v{FV+8*r+2*i}, v{FV+8*r+2*i+1}")
        a("s_mov_b32 exec_hi, 0x00ffffff")
        a(f"ds_write_b128 v3, v[{RAW+4*r}:{RAW+4*r+3}] offset:{r*912}")
        a("s_mov_b32 exec_hi, -1")
    ln = [x.strip() for x in a.l]
    a = main
    def emit_ln(mem):
        step = max(1, (len(ln) - 20) // len(mem))
        mi = 0
        for i, x in enumerate(ln):
            a(x)
            if i % step == step - 1 and mi < len(mem) and not x.startswith("s_mov_b32 exec_hi, 0x00") and not x.startswith("ds_write"):
                for y in mem[mi]: a(y)
                mi += 1
        while mi < len(mem):
            for y in mem[mi]: a(y)
            mi += 1
    a("s_cmp_ge_u32 s52, 4")
    a("s_cbranch_scc1 K0_ln2")
    emit_ln(t1l + side)
    a("s_branch K0_ln3")
    a.label("K0_ln2")
    emit_ln(side)
    a.label("K0_ln3")
    a("v_and_b32 v4, 31, v1")
    a("s_movk_i32 s61, 912")
    a("v_mul_lo_u32 v4, v4, s61")
    a("v_lshl_add_u32 v4, v7, 4, v4")
    a("s_waitcnt lgkmcnt(0)")
    a("s_barrier")
    stamp(a, 2)
    a("s_cmp_ge_u32 s52, 4")
    a("s_cbranch_scc1 K0_xn")
    for t in range(3):
        a(f"ds_read_b128 v[{AF+4*t}:{AF+4*t+3}], v4 offset:{32*t}")
    a("s_waitcnt vmcnt(0)")
    acc = f"v[{ACC0}:{ACC0+15}]"
    for t in range(28):
        if t + 3 < 28:
            a(f"ds_read_b128 v[{AF+4*((t+3)&3)}:{AF+4*((t+3)&3)+3}], v4 offset:{32*(t+3)}")
        a(f"s_waitcnt lgkmcnt({min(3, 27-t)})")
        a(f"v_mfma_f32_32x32x16_bf16 {acc}, v[{AF+4*(t&3)}:{AF+4*(t&3)+3}], v[{TB+4*t}:{TB+4*t+3}], {'0' if t == 0 else acc}")
    a("v_and_b32 v3, 31, v1")
    a("v_lshlrev_b32 v3, 12, v3")
    a("v_lshl_add_u32 v3, v7, 9, v3")
    a("s_lshl_b32 s61, s53, 2")
    a("s_add_u32 s61, s61, s52")
    a("s_lshl_b32 s61, s61, 17")
    a("s_lshr_b32 s62, s54, 5")
    a("s_lshl_b32 s62, s62, 11")
    a("s_add_u32 s61, s61, s62")
    a("s_and_b32 s62, s54, 31")
    a("s_lshl_b32 s62, s62, 4")
    a("s_add_u32 s61, s61, s62")
    a(f"s_add_u32 s61, s61, {OFF_UF}")
    a("s_nop 7")
    a("s_nop 3")
    for r in range(0, 16, 2):
        a(f"v_cvt_pk_bf16_f32 v{AF + r//2}, v{ACC0+r}, v{ACC0+r+1}")
    for t in range(2):
        a(f"buffer_store_dwordx4 v[{AF+4*t}:{AF+4*t+3}], v3, s[36:39], s61 offen offset:{1024*t}")
    a("s_branch K0_side")
    a.label("K0_xn")
    a("s_mul_i32 s61, s53, 7")
    a("s_sub_u32 s62, s52, 4")
    a("s_add_u32 s61, s61, s62")
    a("s_lshl_b32 s63, s61, 5")
    a("v_add_u32 v4, s63, v4")
    a(f"ds_read_b128 v[{TB}:{TB+3}], v4")
    a(f"ds_read_b128 v[{TB+4}:{TB+7}], v4 offset:128")
    a(f"s_mul_i32 s63, s54, 28")
    a("s_add_u32 s63, s63, s61")
    a("s_lshl_b32 s63, s63, 10")
    a(f"s_add_u32 s63, s63, {OFF_XNF}")
    a("s_waitcnt vmcnt(0) lgkmcnt(0)")
    a(f"buffer_store_dwordx4 v[{TB}:{TB+3}], v2, s[36:39], s63 offen")
    a("s_cmp_ge_u32 s62, 3")
    a("s_cbranch_scc1 K0_side")
    a("s_add_u32 s63, s63, 4096")
    a(f"buffer_store_dwordx4 v[{TB+4}:{TB+7}], v2, s[36:39], s63 offen")
    a.label("K0_side")
    stamp(a, 3)
    a(f"v_lshl_or_b32 v{SJ+0}, v{SJ+1}, 16, v{SJ+0}")
    a(f"v_lshl_or_b32 v{SJ+1}, v{SJ+3}, 16, v{SJ+2}")
    a(f"v_lshl_or_b32 v{SJ+2}, v{SJ+5}, 16, v{SJ+4}")
    a(f"v_lshl_or_b32 v{SJ+3}, v{SJ+7}, 16, v{SJ+6}")
    a("v_lshlrev_b32 v3, 13, v5")
    a("s_lshl_b32 s70, s69, 4")
    a(f"s_add_u32 s70, s70, {OFF_WT}")
    a("v_cmp_gt_u32 vcc, 225, v5")
    a("s_and_saveexec_b64 s[78:79], vcc")
    a(f"buffer_store_dwordx4 v[{SJ}:{SJ+3}], v3, s[36:39], s70 offen")
    a("s_mov_b64 exec, s[78:79]")
    a.label("K0_fin")
    stamp(a, 4)
    stamp_flush(a, 5, 52)
    a.label("K0_end")
    a("s_endpgm")
```

```python
from common import *
import common

NB = 10
ACC = 16
RING = 80
AFR = 240
XR = 248
TRB = 240
RED = 81920
K3_LDS = RED + 49152

def gen_k3(a, tabsym):
    common.CUR = "k3"
    khead(a, "k3_kernel")
    a("s_cmp_ge_u32 s2, 224")
    a("s_cbranch_scc1 K3_end")
    a("s_load_dwordx2 s[4:5], s[0:1], 0")
    a("s_load_dwordx2 s[6:7], s[0:1], 56")
    a("s_load_dwordx2 s[8:9], s[0:1], 72")
    a("s_load_dwordx2 s[44:45], s[0:1], 48")
    a("s_getpc_b64 s[10:11]")
    a(f"s_add_u32 s10, s10, {tabsym}@rel32@lo+4")
    a(f"s_addc_u32 s11, s11, {tabsym}@rel32@hi+12")
    a("v_lshrrev_b32 v1, 6, v0")
    a("s_nop 0")
    a("v_readfirstlane_b32 s30, v1")
    a("v_and_b32 v1, 63, v0")
    a("s_and_b32 s31, s2, 7")
    a("s_lshr_b32 s32, s2, 3")
    a("s_mul_i32 s33, s32, 37")
    a("s_lshr_b32 s33, s33, 8")
    a("s_mul_i32 s34, s33, 7")
    a("s_sub_u32 s34, s32, s34")
    a("s_lshl_b32 s31, s31, 2")
    a("s_add_u32 s33, s33, s31")
    a("s_mul_i32 s40, s30, 35")
    a(f"s_mul_i32 s41, s40, {16*896}")
    a("s_lshl_b32 s40, s40, 10")
    a(f"s_mul_i32 s42, s30, {NB*2048}")
    a("s_waitcnt lgkmcnt(0)")
    stamp(a, 0)
    srd(a, 12, 4, S * D * 2)
    srd(a, 16, 6, S * D * 2)
    srd(a, 20, 8, WS_BYTES)
    srd(a, 24, 10, 14 * 29 * 1024)
    srd(a, 48, 44, F * D * 2)
    a("v_lshlrev_b32 v2, 4, v1")
    a(f"s_mul_i32 s35, s33, {2*NSTEP*1024}")
    a(f"s_add_u32 s35, s35, {OFF_HZ}")
    a("v_add_u32 v5, s35, v2")
    a(f"v_add_u32 v6, {NSTEP*1024}, v5")
    a("v_lshrrev_b32 v9, 5, v1")
    a(f"s_mul_i32 s35, s34, {2*29*1024}")
    a("v_add_u32 v7, s35, v2")
    a(f"v_add_u32 v8, {29*1024}, v7")
    a("v_lshrrev_b32 v3, 3, v1")
    a("v_and_b32 v4, 7, v1")
    a("v_bfe_u32 v11, v3, 1, 1")
    a("v_lshlrev_b32 v11, 2, v11")
    a("v_xor_b32 v4, v4, v11")
    a("s_movk_i32 s35, 896")
    a("v_mul_lo_u32 v3, v3, s35")
    a("v_lshl_add_u32 v3, v4, 4, v3")
    a("s_lshl_b32 s35, s34, 7")
    a("v_add_u32 v3, s35, v3")
    a("v_bfe_u32 v11, v1, 2, 2")
    a("v_lshl_add_u32 v4, v9, 2, v11")
    a("v_lshlrev_b32 v4, 7, v4")
    a("v_bfe_u32 v12, v1, 4, 1")
    a("v_bfe_u32 v13, v1, 1, 1")
    a("v_lshl_add_u32 v12, v12, 1, v13")
    a("v_lshrrev_b32 v13, 1, v11")
    a("v_lshlrev_b32 v13, 2, v13")
    a("v_xor_b32 v12, v12, v13")
    a("v_lshl_add_u32 v4, v12, 4, v4")
    a("v_and_b32 v13, 1, v1")
    a("v_lshl_add_u32 v4, v13, 3, v4")
    a("v_add_u32 v4, s42, v4")
    a("v_xor_b32 v14, 64, v4")
    a("v_and_b32 v10, 31, v1")
    a("v_lshlrev_b32 v10, 6, v10")
    a("s_lshl_b32 s35, s33, 1")
    a("s_and_b32 s36, s30, 1")
    a("s_add_u32 s35, s35, s36")
    a("v_add_u32 v10, s35, v10")
    a("s_movk_i32 s35, 896")
    a("v_mul_lo_u32 v10, v10, s35")
    a("s_lshl_b32 s35, s34, 7")
    a("s_lshr_b32 s36, s30, 1")
    a("s_lshl_b32 s36, s36, 6")
    a("s_add_u32 s35, s35, s36")
    a("v_add_u32 v10, s35, v10")
    a("v_lshl_add_u32 v10, v9, 3, v10")
    a("s_cmp_eq_u32 s30, 3")
    a("s_cbranch_scc1 K3_m3")

    def mainloop(kinds):
        n = len(kinds)
        def issue(i):
            r = RING + 16 * (i % NB)
            if kinds[i] == 'G':
                a(f"s_add_u32 s43, s42, {(i % NB)*2048}")
                a("s_mov_b32 m0, s43")
                a("buffer_load_dwordx4 v3, s[48:51], s41 offen lds")
                a(f"s_add_u32 s41, s41, {8*896 - 1024}")
                a("buffer_load_dwordx4 v3, s[48:51], s41 offen offset:1024 lds")
                a(f"s_add_u32 s41, s41, {8*896 + 1024}")
            else:
                T = i - kinds.index('Z')
                a(f"s_mov_b32 s43, {T*1024}")
                a(f"buffer_load_dwordx4 v[{r}:{r+3}], v7, s[24:27], s43 offen")
                a(f"buffer_load_dwordx4 v[{r+4}:{r+7}], v8, s[24:27], s43 offen")
            a(f"buffer_load_dwordx4 v[{r+8}:{r+11}], v5, s[20:23], s40 offen")
            a(f"buffer_load_dwordx4 v[{r+12}:{r+15}], v6, s[20:23], s40 offen")
            a("s_add_u32 s40, s40, 1024")
        def trr(i):
            if kinds[i] != 'G':
                return 0
            r = RING + 16 * (i % NB)
            for ds, av in ((0, 4), (1, 14)):
                for q in range(2):
                    a(f"ds_read_b64_tr_b16 v[{r+4*ds+2*q}:{r+4*ds+2*q+1}], v{av} offset:{(i % NB)*2048+q*1024}")
            return 4
        for i in range(NB):
            issue(i)
        stamp(a, 1)
        XI = n - NB
        a(f"s_waitcnt vmcnt({4*(NB-1)})")
        stamp(a, 2)
        trr(0)
        for i in range(n):
            nl = 0
            if i + 1 < n:
                ahead = min(i + NB, n) - (i + 1) - 1
                xl = 4 if i > XI else 0
                a(f"s_waitcnt vmcnt({4*ahead + xl})")
                nl = trr(i + 1)
            a(f"s_waitcnt lgkmcnt({nl})")
            r = RING + 16 * (i % NB)
            for ds in range(2):
                for bs in range(2):
                    tau = ds * 2 + bs
                    ac = f"v[{ACC+16*tau}:{ACC+16*tau+15}]"
                    a(f"v_mfma_f32_32x32x16_bf16 {ac}, v[{r+4*ds}:{r+4*ds+3}], v[{r+8+4*bs}:{r+8+4*bs+3}], {'0' if i == 0 else ac}")
            if i + NB < n:
                issue(i + NB)
            if i == XI:
                for g in range(4):
                    a(f"buffer_load_dwordx2 v[{XR+2*g}:{XR+2*g+1}], v10, s[12:15], 0 offen offset:{16*g}")
    mainloop(['G'] * 35)
    a("s_branch K3_red")
    a.label("K3_m3")
    mainloop(['G'] * 7 + ['Z'] * 29)
    a.label("K3_red")
    stamp(a, 3)
    a("s_waitcnt vmcnt(0)")
    a(f"v_add_u32 v2, {RED}, v2")
    for w in range(1, 4):
        a(f"s_cmp_eq_u32 s30, {w}")
        a(f"s_cbranch_scc1 K3_w{w}")
    for w in range(4):
        if w:
            a.label(f"K3_w{w}")
        a("s_nop 15")
        for tau in range(4):
            if tau == w:
                continue
            slot = (w - tau - 1) % 4
            for g in range(4):
                a(f"ds_write_b128 v2, v[{ACC+16*tau+4*g}:{ACC+16*tau+4*g+3}] offset:{tau*12288+slot*4096+g*1024}")
        a("s_waitcnt lgkmcnt(0)")
        a("s_barrier")
        for slot in range(3):
            for g in range(4):
                a(f"ds_read_b128 v[{RING+16*slot+4*g}:{RING+16*slot+4*g+3}], v2 offset:{w*12288+slot*4096+g*1024}")
        own = ACC + 16 * w
        for slot in range(3):
            a(f"s_waitcnt lgkmcnt({8-4*slot})")
            for r in range(16):
                a(f"v_add_f32 v{own+r}, v{own+r}, v{RING+16*slot+r}")
        for g in range(4):
            for p in range(2):
                x = XR + 2 * g + p
                a(f"v_lshlrev_b32 v11, 16, v{x}")
                a(f"v_and_b32 v12, 0xffff0000, v{x}")
                a(f"v_add_f32 v11, v11, v{own+4*g+2*p}")
                a(f"v_add_f32 v12, v12, v{own+4*g+2*p+1}")
                a(f"v_cvt_pk_bf16_f32 v{x}, v11, v12")
            a(f"buffer_store_dwordx2 v[{XR+2*g}:{XR+2*g+1}], v10, s[16:19], 0 offen offset:{16*g}")
        if w < 3:
            a("s_branch K3_fin")
    a.label("K3_fin")
    if common.STAMP == "k3":
        a("s_waitcnt vmcnt(0)")
    stamp(a, 4)
    stamp_flush(a, 5, 30)
    a.label("K3_end")
    a("s_endpgm")
```

```python
import numpy as np

S, D, F, NK = 2048, 448, 1792, 225
NT3 = 29
NSTEP = 112 + NT3
OFF_HZ = 0
SZ_HZ = 64 * NSTEP * 1024
OFF_WDF = OFF_HZ + SZ_HZ
SZ_WDF = 14 * NSTEP * 1024
OFF_WT = OFF_WDF + SZ_WDF
SZ_WT = 226 * 8192
OFF_UF = OFF_WT + SZ_WT
SZ_UF = 512 * 64 * 64
WS_BYTES = 268435456

def bf16(x):
    u = int(np.float32(x).view(np.uint32))
    return ((u + 0x7FFF + ((u >> 16) & 1)) >> 16) & 0xFFFF

def f32hex(x):
    return "0x%08x" % int(np.float32(x).view(np.uint32))

class Asm:
    def __init__(self):
        self.l = []
    def __call__(self, s):
        self.l.append("    " + s)
    def label(self, s):
        self.l.append(s + ":")
    def raw(self, s):
        self.l.append(s)
    def c(self, s):
        self.l.append("    ; " + s)
    def text(self):
        return "\n".join(self.l) + "\n"

def srd(a, sd, ptr_lo, nbytes):
    a(f"s_mov_b32 s{sd}, s{ptr_lo}")
    a(f"s_and_b32 s{sd+1}, s{ptr_lo+1}, 0xffff")
    a(f"s_mov_b32 s{sd+2}, {nbytes}")
    a(f"s_mov_b32 s{sd+3}, 0x00020000")

def kd(name, vgpr, sgpr, accum=None):
    if accum is None:
        accum = (vgpr + 3) // 4 * 4
    return f""".amdhsa_kernel {name}
  .amdhsa_next_free_vgpr {vgpr}
  .amdhsa_next_free_sgpr {sgpr}
  .amdhsa_accum_offset {accum}
  .amdhsa_group_segment_fixed_size 0
  .amdhsa_kernarg_size 80
  .amdhsa_user_sgpr_count 2
  .amdhsa_user_sgpr_kernarg_segment_ptr 1
  .amdhsa_system_sgpr_workgroup_id_x 1
.end_amdhsa_kernel
"""

def khead(a, name):
    a.raw(f".globl {name}")
    a.raw(".p2align 8")
    a.raw(f".type {name},@function")
    a.label(name)

STAMP = False
CUR = None
import os
MAPX = bool(os.environ.get('MAPX'))
PFW = bool(int(os.environ.get('PFW', '0')))
ROT1 = bool(int(os.environ.get('ROT1', '0')))
PFB = bool(int(os.environ.get('PFB', '1')))
FFT1 = bool(int(os.environ.get('FFT1', '0')))
PF3 = bool(int(os.environ.get('PF3', '1')))
XBAR = bool(int(os.environ.get('XBAR', '1')))
NPRE = int(os.environ.get('NPRE', '8'))
NF1 = int(os.environ.get('NF1', '14'))
NPF = int(os.environ.get('NPF', '14'))
PRE1 = int(os.environ.get('PRE1', '2'))
T1HI = float(os.environ.get('T1HI', '0.6'))
PFLO = float(os.environ.get('PFLO', '0.3'))
PFD0 = bool(int(os.environ.get('PFD0', '1')))
NOSIDE = bool(os.environ.get('NOSIDE'))
def stamp(a, i):
    if globals()['STAMP'] and globals()['STAMP'] == globals()['CUR']:
        a("s_memtime s[80:81]")
        a("s_waitcnt lgkmcnt(0)")
        a(f"s_mov_b32 s{84+i}, s80")
        if i == 0:
            a("s_memrealtime s[80:81]")
            a("s_waitcnt lgkmcnt(0)")
            a(f"s_mov_b32 s94, s80")

def stamp_flush(a, n, wave_sreg):
    if globals()['STAMP'] and globals()['STAMP'] == globals()['CUR']:
        a("s_load_dwordx2 s[80:81], s[0:1], 72")
        a("s_waitcnt lgkmcnt(0)")
        a("s_and_b32 s81, s81, 0xffff")
        a("s_mov_b32 s82, 0x10000000")
        a("s_mov_b32 s83, 0x00020000")
        a("s_lshl_b32 s79, s2, 4")
        a(f"s_add_u32 s79, s79, s{wave_sreg}")
        a("s_lshl_b32 s79, s79, 6")
        a(f"s_add_u32 s79, s79, {OFF_DBG}")
        a("v_mov_b32 v120, 0")
        a("s_memrealtime s[76:77]")
        a("s_waitcnt lgkmcnt(0)")
        a("v_mov_b32 v121, s94")
        a("buffer_store_dword v121, v120, s[80:83], s79 offen offset:56")
        a("v_mov_b32 v121, s76")
        a("buffer_store_dword v121, v120, s[80:83], s79 offen offset:60")
        for i in range(n):
            a(f"v_mov_b32 v121, s{84+i}")
            a(f"buffer_store_dword v121, v120, s[80:83], s79 offen offset:{4*i}")
OFF_DBG = 64 << 20
OFF_XNF = OFF_UF + SZ_UF
SZ_XNF = 64 * 28 * 1024
```

```python
from common import *
import common

XCH = 32 * 912
K0_LDS = XCH + 8 * 4352
TB = 96
ACC0 = 128
AF = 192
RD = 96
SL = 40
SO = 72
RAW = 40
FV = 56

def gen_k0(a, tabsym, gdsym):
    common.CUR = "k0"
    khead(a, "k0_kernel")
    a("s_cmp_ge_u32 s2, 256")
    a("s_cbranch_scc1 K0_end")
    a("s_load_dwordx16 s[4:19], s[0:1], 0")
    a("s_load_dwordx4 s[20:23], s[0:1], 64")
    a("s_getpc_b64 s[58:59]")
    a(f"s_add_u32 s58, s58, {tabsym}@rel32@lo+4")
    a(f"s_addc_u32 s59, s59, {tabsym}@rel32@hi+12")
    a("s_getpc_b64 s[56:57]")
    a(f"s_add_u32 s56, s56, {gdsym}@rel32@lo+4")
    a(f"s_addc_u32 s57, s57, {gdsym}@rel32@hi+12")
    a("v_lshrrev_b32 v1, 6, v0")
    a("s_nop 0")
    a("v_readfirstlane_b32 s52, v1")
    a("v_and_b32 v1, 63, v0")
    a("s_bfe_u32 s53, s2, 0x20003")
    a("s_lshr_b32 s54, s2, 5")
    a("s_lshl_b32 s54, s54, 3")
    a("s_and_b32 s55, s2, 7")
    a("s_add_u32 s54, s54, s55")
    a("s_lshr_b32 s65, s54, 5")
    a("s_lshl_b32 s65, s65, 4")
    a("s_bfe_u32 s66, s54, 0x10004")
    a("s_lshl_b32 s66, s66, 2")
    a("s_add_u32 s65, s65, s66")
    a("s_lshr_b32 s66, s52, 2")
    a("s_lshl_b32 s66, s66, 3")
    a("s_and_b32 s67, s52, 3")
    a("s_add_u32 s66, s66, s67")
    a("s_add_u32 s55, s65, s66")
    a("s_lshl_b32 s55, s55, 4")
    a("s_and_b32 s68, s54, 15")
    a("s_add_u32 s55, s55, s68")
    a(f"s_mul_i32 s55, s55, {4*896}")
    a("s_mov_b32 s60, 0x3f803f80")
    for i in range(16):
        a(f"v_mov_b32 v{RAW+i}, 0")
    a("v_lshlrev_b32 v2, 4, v1")
    a("s_waitcnt lgkmcnt(0)")
    stamp(a, 0)
    srd(a, 24, 4, S * D * 2)
    a("s_cmp_eq_u32 s52, 8")
    a("s_cbranch_scc1 K0_nox")
    a("s_mov_b32 exec_hi, 0x00ffffff")
    for r in range(4):
        a(f"buffer_load_dwordx4 v[{RAW+4*r}:{RAW+4*r+3}], v2, s[24:27], s55 offen offset:{896*r}")
    a("s_mov_b32 exec_hi, -1")
    a.label("K0_nox")
    srd(a, 36, 22, WS_BYTES)
    srd(a, 40, 6, S * NK * 2)
    srd(a, 44, 8, S * NK * 2)
    srd(a, 48, 16, F * D * 2)
    srd(a, 28, 58, 8 * 28 * 1024)
    srd(a, 32, 56, 14 * 29 * 1024)
    a("v_lshrrev_b32 v7, 5, v1")
    a("v_min_u32 v18, 55, v1")
    a("v_lshlrev_b32 v18, 4, v18")
    if common.XBAR:
        a("s_barrier")
    main = a
    a = Asm()
    SUM = [8, 9, 10, 11]
    T2 = [12, 13, 14, 15]
    MB = [88, 90, 92, 94]
    MB2 = [89, 91, 93, 95]
    VR = [20, 21, 22, 23]
    T2P = [24, 26, 28, 30]
    R4 = range(4)
    for r in R4:
        a(f"v_dot2_f32_bf16 v{SUM[r]}, v{RAW+4*r}, s60, 0")
        a(f"v_dot2_f32_bf16 v{T2[r]}, v{RAW+4*r+1}, s60, 0")
    for r in R4:
        a(f"v_dot2_f32_bf16 v{SUM[r]}, v{RAW+4*r+2}, s60, v{SUM[r]}")
        a(f"v_dot2_f32_bf16 v{T2[r]}, v{RAW+4*r+3}, s60, v{T2[r]}")
    a("s_nop 3")
    for r in R4:
        a(f"v_add_f32 v{SUM[r]}, v{SUM[r]}, v{T2[r]}")
    def reduce4(vs, sd):
        a("s_nop 1")
        for sh in (1, 2, 4, 8):
            for v in vs:
                a(f"v_add_f32_dpp v{v}, v{v}, v{v} row_shr:{sh} row_mask:0xf bank_mask:0xf bound_ctrl:0")
        for v in vs:
            a(f"v_add_f32_dpp v{v}, v{v}, v{v} row_bcast:15 row_mask:0xa bank_mask:0xf")
        for v in vs:
            a(f"v_add_f32_dpp v{v}, v{v}, v{v} row_bcast:31 row_mask:0xc bank_mask:0xf")
        for i, v in enumerate(vs):
            a(f"v_readlane_b32 s{sd+i}, v{v}, 63")
        a("s_nop 1")
    reduce4(SUM, 61)
    for r in R4:
        a(f"v_mov_b32 v{SUM[r]}, s{61+r}")
    for r in R4:
        a(f"v_mul_f32 v{SUM[r]}, {f32hex(1.0/448)}, v{SUM[r]}")
    for r in R4:
        a(f"v_cvt_pk_bf16_f32 v{MB[r]}, v{SUM[r]}, v{SUM[r]}")
    for r in R4:
        a(f"v_and_b32 v{MB[r]}, 0xffff0000, v{MB[r]}")
    for r in R4:
        for i in range(4):
            a(f"v_lshlrev_b32 v{FV+8*r+2*i}, 16, v{RAW+4*r+i}")
            a(f"v_and_b32 v{FV+8*r+2*i+1}, 0xffff0000, v{RAW+4*r+i}")
        a(f"v_mov_b32 v{MB2[r]}, v{MB[r]}")
        for i in range(0, 8, 2):
            a(f"v_pk_add_f32 v[{FV+8*r+i}:{FV+8*r+i+1}], v[{FV+8*r+i}:{FV+8*r+i+1}], v[{MB[r]}:{MB2[r]}] neg_lo:[0,1] neg_hi:[0,1]")
        a(f"v_pk_mul_f32 v[{T2P[r]}:{T2P[r]+1}], v[{FV+8*r}:{FV+8*r+1}], v[{FV+8*r}:{FV+8*r+1}]")
        for i in range(2, 8, 2):
            a(f"v_pk_fma_f32 v[{T2P[r]}:{T2P[r]+1}], v[{FV+8*r+i}:{FV+8*r+i+1}], v[{FV+8*r+i}:{FV+8*r+i+1}], v[{T2P[r]}:{T2P[r]+1}]")
        a(f"v_add_f32 v{VR[r]}, v{T2P[r]}, v{T2P[r]+1}")
    a("v_cmp_gt_u32 vcc, 56, v1")
    a("s_nop 1")
    for r in R4:
        a(f"v_cndmask_b32 v{VR[r]}, 0, v{VR[r]}, vcc")
    reduce4(VR, 61)
    for r in R4:
        a(f"v_mov_b32 v{VR[r]}, s{61+r}")
    def each(fmt):
        for r in R4:
            a(fmt.format(v=VR[r], m=SUM[r], mb=MB[r], t=T2[r]))
    each("v_mul_f32 v{v}, " + f32hex(1.0/448) + ", v{v}")
    each("v_sub_f32 v{t}, v{m}, v{mb}")
    each("v_fma_f32 v{v}, -v{t}, v{t}, v{v}")
    each("v_max_f32 v{v}, 0, v{v}")
    each("v_cvt_pk_bf16_f32 v{v}, v{v}, v{v}")
    each("v_and_b32 v{v}, 0xffff0000, v{v}")
    each("v_add_f32 v{v}, " + f32hex(1e-5) + ", v{v}")
    each("v_cvt_pk_bf16_f32 v{v}, v{v}, v{v}")
    each("v_and_b32 v{v}, 0xffff0000, v{v}")
    each("v_sqrt_f32 v{v}, v{v}")
    a("s_nop 0")
    each("v_cvt_pk_bf16_f32 v{v}, v{v}, v{v}")
    each("v_and_b32 v{v}, 0xffff0000, v{v}")
    each("v_rcp_f32 v{t}, v{v}")
    a(f"s_mul_i32 s61, s52, 912")
    a("v_lshlrev_b32 v3, 3, v1")
    a("v_add_u32 v3, s61, v3")
    for r in R4:
        for i in range(4):
            a(f"v_cvt_pk_bf16_f32 v{RAW+4*r+i}, v{FV+8*r+2*i}, v{FV+8*r+2*i+1}")
        for i in range(4):
            a(f"v_lshlrev_b32 v{FV+8*r+2*i}, 16, v{RAW+4*r+i}")
            a(f"v_and_b32 v{FV+8*r+2*i+1}, 0xffff0000, v{RAW+4*r+i}")
        a(f"v_mov_b32 v{MB[r]}, v{T2[r]}")
        a(f"v_mov_b32 v{MB2[r]}, v{T2[r]}")
        for i in range(0, 8, 2):
            a(f"v_pk_mul_f32 v[{FV+8*r+i}:{FV+8*r+i+1}], v[{FV+8*r+i}:{FV+8*r+i+1}], v[{MB[r]}:{MB2[r]}]")
        for i in range(4):
            a(f"v_cvt_pk_bf16_f32 v{RAW+4*r+i}, v{FV+8*r+2*i}, v{FV+8*r+2*i+1}")
        a(f"v_perm_b32 v{FV+8*r}, v{RAW+4*r+1}, v{RAW+4*r}, s70")
        a(f"v_perm_b32 v{FV+8*r+1}, v{RAW+4*r+3}, v{RAW+4*r+2}, s70")
        a(f"v_perm_b32 v{FV+8*r+2}, v{RAW+4*r+1}, v{RAW+4*r}, s71")
        a(f"v_perm_b32 v{FV+8*r+3}, v{RAW+4*r+3}, v{RAW+4*r+2}, s71")
        a("s_mov_b32 exec_hi, 0x00ffffff")
        a(f"ds_write_b64 v3, v[{FV+8*r}:{FV+8*r+1}] offset:{r*7296}")
        a(f"ds_write_b64 v3, v[{FV+8*r+2}:{FV+8*r+3}] offset:{r*7296+448}")
        a("s_mov_b32 exec_hi, -1")
    ln = [x.strip() for x in a.l]
    a = main
    def emit_ln(mem, lo=0.0, hi=0.9, post=()):
        n = len(ln)
        pos = [int(n * (lo + (hi - lo) * (i + 0.5) / max(1, len(mem)))) for i in range(len(mem))]
        mi = 0
        masked = False
        for i, x in enumerate(ln):
            a(x)
            if x.startswith("s_mov_b32 exec_hi"):
                masked = not x.endswith("-1")
            while mi < len(mem) and pos[mi] <= i and not masked:
                for y in mem[mi]: a(y)
                mi += 1
        assert mi == len(mem)
        for y in post: a(y)
        a("s_branch K0_ln3")
    a("s_mov_b32 s70, 0x05040100")
    a("s_mov_b32 s71, 0x07060302")
    a("s_cmp_eq_u32 s52, 8")
    a("s_cbranch_scc1 K0_w8")
    a("s_and_b32 s73, s52, 1")
    a("s_bfe_u32 s74, s52, 0x10001")
    a("s_lshr_b32 s75, s52, 2")
    a("s_lshl_b32 s76, s53, 1")
    a("s_add_u32 s76, s76, s73")
    a("s_lshl_b32 s77, s76, 1")
    a("s_add_u32 s77, s77, s74")
    a("s_lshl_b32 s77, s77, 1")
    a("s_add_u32 s77, s77, s75")
    a(f"s_mul_i32 s77, s77, {7*1024}")
    for t in range(7):
        a(f"buffer_load_dwordx4 v[{TB+4*t}:{TB+4*t+3}], v2, s[28:31], s77 offen offset:{(t&3)*1024}")
        if t == 3:
            a("s_add_u32 s77, s77, 4096")
    a("s_waitcnt vmcnt(7)")
    stamp(a, 1)
    emit_ln([], 0, 1, ["s_waitcnt vmcnt(0)"])
    a.label("K0_w8")
    a("v_and_b32 v5, 7, v1")
    a("v_and_b32 v6, 56, v1")
    a("s_and_b32 s66, s2, 3")
    a("s_lshl_b32 s66, s66, 6")
    a("v_add_u32 v6, s66, v6")
    a("v_min_u32 v6, 217, v6")
    a("s_lshr_b32 s66, s2, 4")
    a("s_bfe_u32 s67, s2, 0x20002")
    a("s_lshl_b32 s67, s67, 3")
    a("s_lshl_b32 s72, s66, 5")
    a("s_add_u32 s72, s72, s67")
    a("s_lshl_b32 s72, s72, 4")
    a(f"s_add_u32 s72, s72, {OFF_WT-8192}")
    a("s_lshl_b32 s66, s66, 7")
    a("s_add_u32 s66, s66, s67")
    a("s_mul_i32 s66, s66, 450")
    a("v_mul_u32_u24 v16, 450, v5")
    a("v_lshl_add_u32 v16, v6, 1, v16")
    a("v_add_u32 v17, 1, v6")
    a("v_lshlrev_b32 v17, 13, v17")
    a("v_lshl_add_u32 v17, v5, 4, v17")
    for j in range(4):
        a(f"buffer_load_dwordx4 v[{SL+4*j}:{SL+4*j+3}], v16, s[40:43], s66 offen")
        a(f"buffer_load_dwordx4 v[{SL+16+4*j}:{SL+16+4*j+3}], v16, s[44:47], s66 offen")
        if j < 3:
            a(f"s_add_u32 s66, s66, {32*450}")
    a("s_getpc_b64 s[48:49]")
    a("s_add_u32 s48, s48, ctab@rel32@lo+4")
    a("s_addc_u32 s49, s49, ctab@rel32@hi+12")
    a("s_and_b32 s49, s49, 0xffff")
    a(f"s_mov_b32 s50, {52*1024}")
    a("s_getpc_b64 s[32:33]")
    a("s_add_u32 s32, s32, k1_kernel@rel32@lo+4")
    a("s_addc_u32 s33, s33, k1_kernel@rel32@hi+12")
    a("s_and_b32 s33, s33, 0xffff")
    a("s_mov_b32 s34, K3_end-k1_kernel")
    a("s_lshr_b32 s66, s2, 3")
    a("s_lshl_b32 s66, s66, 10")
    for y in ["buffer_load_dwordx4 v[32:35], v2, s[48:51], s66 offen",
              "buffer_load_dwordx4 v[32:35], v2, s[32:35], s66 offen", "s_add_u32 s66, s66, 32768",
              "buffer_load_dwordx4 v[32:35], v2, s[48:51], s66 offen"]:
        a(y)
    srd(a, 40, 12, D * F * 2)
    srd(a, 44, 14, D * F * 2)
    a("s_lshr_b32 s66, s2, 3")
    a(f"s_mul_i32 s66, s66, {14*3584}")
    a("s_and_b32 s67, s2, 7")
    a("s_lshr_b32 s67, s67, 1")
    a("s_mul_i32 s67, s67, 896")
    a("s_add_u32 s66, s66, s67")
    NF1 = common.NF1
    def pfl(r0, r1):
        for r in range(r0, r1):
            for m in range(2):
                a(f"buffer_load_dwordx4 v[32:35], v18, s[{40+4*m}:{43+4*m}], s66 offen offset:{3584*(r&1)}")
            if r & 1:
                a("s_add_u32 s66, s66, 7168")
    pfl(0, NF1)
    stamp(a, 1)
    a("s_barrier")
    a("s_barrier")
    a(f"s_waitcnt vmcnt({3+2*NF1})")
    stamp(a, 2)
    for kk in range(8):
        q, sel = kk >> 1, (70 + (kk & 1))
        for ri in range(2):
            for jp in range(2):
                a(f"v_perm_b32 v{SO+4*kk+2*ri+jp}, v{SL+16*ri+4*(2*jp+1)+q}, v{SL+16*ri+4*(2*jp)+q}, s{sel}")
        a(f"buffer_store_dwordx4 v[{SO+4*kk}:{SO+4*kk+3}], v17, s[36:39], s72 offen sc1")
        a("s_add_u32 s72, s72, 8192")
    stamp(a, 3)
    pfl(NF1, 14)
    a("s_branch K0_fin")
    a.label("K0_ln3")
    a("v_and_b32 v4, 31, v1")
    a("s_movk_i32 s61, 912")
    a("v_mul_lo_u32 v4, v4, s61")
    a("v_lshrrev_b32 v5, 4, v1")
    a("v_and_b32 v6, 7, v1")
    a("v_lshl_add_u32 v8, v5, 3, v6")
    a("v_mul_lo_u32 v8, v8, s61")
    a("v_and_b32 v9, 8, v1")
    a("v_add_u32 v8, v8, v9")
    a(f"v_mul_u32_u24 v5, {28*1024}, v5")
    a("v_lshl_add_u32 v5, v9, 6, v5")
    a("v_and_b32 v9, 4, v6")
    a("v_lshl_add_u32 v5, v9, 5, v5")
    a("v_and_b32 v9, 3, v6")
    a("v_lshl_add_u32 v12, v9, 4, v5")
    a("v_mov_b32 v5, v8")
    a("v_lshl_add_u32 v4, v7, 4, v4")
    a("s_mul_i32 s61, s74, 448")
    a("s_mul_i32 s62, s75, 224")
    a("s_add_u32 s61, s61, s62")
    a("v_add_u32 v4, s61, v4")
    a("s_mul_i32 s61, s53, 7")
    a("s_add_u32 s61, s61, s52")
    a("s_lshl_b32 s63, s61, 4")
    a("v_add_u32 v5, s63, v5")
    a("s_waitcnt lgkmcnt(0)")
    stamp(a, 2)
    a("s_barrier")
    stamp(a, 3)
    AFL = [144, 148, 152, 156, 160, 164, 36]
    for t in range(7):
        a(f"ds_read_b128 v[{AFL[t]}:{AFL[t]+3}], v4 offset:{32*t}")
    a(f"ds_read_b64 v[{FV}:{FV+1}], v5")
    a(f"ds_read_b64 v[{FV+2}:{FV+3}], v5 offset:448")
    acc = f"v[{ACC0}:{ACC0+15}]"
    for t in range(7):
        a(f"s_waitcnt lgkmcnt({8-t})")
        a(f"v_mfma_f32_32x32x16_bf16 {acc}, v[{AFL[t]}:{AFL[t]+3}], v[{TB+4*t}:{TB+4*t+3}], {'0' if t == 0 else acc}")
    a("s_mul_i32 s63, s68, 112")
    a("s_add_u32 s63, s63, s61")
    a("s_lshl_b32 s63, s63, 10")
    a("s_lshl_b32 s62, s65, 4")
    a("s_add_u32 s63, s63, s62")
    a(f"s_add_u32 s63, s63, {OFF_XNF}")
    a("s_waitcnt lgkmcnt(0)")
    a(f"v_perm_b32 v{FV+4}, v{FV+2}, v{FV}, s70")
    a(f"v_perm_b32 v{FV+5}, v{FV+2}, v{FV}, s71")
    a(f"v_perm_b32 v{FV+6}, v{FV+3}, v{FV+1}, s70")
    a(f"v_perm_b32 v{FV+7}, v{FV+3}, v{FV+1}, s71")
    a("s_cmp_eq_u32 s52, 7")
    a("s_cbranch_scc1 K0_nx")
    a(f"buffer_store_dwordx4 v[{FV+4}:{FV+7}], v12, s[36:39], s63 offen sc1")
    a.label("K0_nx")
    a("s_mul_i32 s61, s52, 4352")
    a(f"s_add_u32 s61, s61, {XCH}")
    a("v_add_u32 v3, s61, v2")
    a("v_and_b32 v13, 3, v1")
    a("v_lshrrev_b32 v6, 2, v1")
    a("s_lshl_b32 s62, s75, 4")
    a("v_add_u32 v6, s62, v6")
    a("v_mul_u32_u24 v4, 1088, v13")
    a("v_lshl_add_u32 v4, v6, 4, v4")
    a("s_mul_i32 s61, s73, 4352")
    a(f"s_add_u32 s61, s61, {XCH}")
    a("v_add_u32 v4, s61, v4")
    a("v_and_b32 v5, 1, v6")
    a("v_and_b32 v6, 30, v6")
    a("s_lshl_b32 s61, s76, 5")
    a("v_add_u32 v6, s61, v6")
    a("s_lshl_b32 s63, s74, 1")
    a("s_sub_u32 s63, 224, s63")
    a("s_cmp_eq_u32 s74, 0")
    a("s_cselect_b32 s61, 1, -1")
    a("s_cselect_b32 s62, 0, 448")
    a("s_cselect_b32 s64, 0, 0x80000000")
    a("v_mul_lo_u32 v8, v6, s61")
    a("v_add_u32 v8, s62, v8")
    a("v_add_u32 v8, v8, v5")
    a("v_lshlrev_b32 v8, 12, v8")
    a("v_lshl_add_u32 v8, v13, 4, v8")
    a("v_lshlrev_b32 v9, 31, v5")
    a("v_and_b32 v9, s64, v9")
    a("v_xor_b32 v10, 1.0, v9")
    a("v_xor_b32 v11, s64, v10")
    a("s_nop 7")
    for g in range(4):
        a(f"ds_write_b128 v3, v[{ACC0+4*g}:{ACC0+4*g+3}] offset:{g*1088}")
    a("s_lshr_b32 s61, s68, 3")
    a("s_lshl_b32 s61, s61, 11")
    a("s_and_b32 s62, s68, 7")
    a("s_lshl_b32 s62, s62, 6")
    a("s_add_u32 s61, s61, s62")
    a("s_lshr_b32 s62, s54, 4")
    a("s_lshl_b32 s62, s62, 9")
    a("s_add_u32 s61, s61, s62")
    a(f"s_add_u32 s61, s61, {OFF_UF}")
    a("v_cmp_ge_u32 vcc, s63, v6")
    a("s_waitcnt lgkmcnt(0)")
    a("s_barrier")
    for p_ in range(2):
        for kh in range(2):
            for gg in range(2):
                r = RD + (p_ * 2 + kh) * 8 + gg * 4
                a(f"ds_read_b128 v[{r}:{r+3}], v4 offset:{(2*p_+4*kh)*4352+gg*512}")
    a("s_waitcnt lgkmcnt(4)")
    for i in range(8):
        a(f"v_add_f32 v{RD+i}, v{RD+i}, v{RD+8+i}")
    for i in range(8):
        a(f"v_mul_f32 v{RD+i}, v10, v{RD+i}")
    a("s_waitcnt lgkmcnt(0)")
    for i in range(8):
        a(f"v_add_f32 v{RD+16+i}, v{RD+16+i}, v{RD+24+i}")
    for i in range(8):
        a(f"v_fma_f32 v{RD+i}, v11, v{RD+16+i}, v{RD+i}")
    for i in range(4):
        a(f"v_cvt_pk_bf16_f32 v{RD+8+i}, v{RD+2*i}, v{RD+2*i+1}")
    a("s_and_saveexec_b64 s[78:79], vcc")
    a(f"buffer_store_dwordx4 v[{RD+8}:{RD+11}], v8, s[36:39], s61 offen sc1")
    a("s_mov_b64 exec, s[78:79]")
    a.label("K0_fin")
    stamp(a, 4)
    stamp_flush(a, 5, 52)
    a.label("K0_end")
    a("s_endpgm")
```

```python
from common import *
import common

XF = 16
ACC = 128
BF = 192
K1_LDS = 122880
PRE = common.PRE1

C1 = -2.0 * 0.7978845608028654 * 1.4426950408889634
C2 = C1 * 0.044715

FR = 16
NG = 48
AC = 64
CK = 128
WV = 208
TW = 240
TMP = 248
ZL = 57344
TWL = 20480

def cfrag32(kind, t):
    return CK + 4 * (kind * 2 + t)
def cfrag64(kind, tau, beta, t):
    return CK + 16 + 4 * (kind * 8 + tau * 4 + beta * 2 + t)

def coff(f):
    return f * 1024 if f < 4 else 8192 + f * 1024
def twoff(stage, beta, p):
    sb = stage * 2 + beta
    return 4096 + p * 1024 if sb == 0 else 20480 + sb * 8192 + p * 1024

def gen_ctab(a):
    a.raw(".p2align 8")
    a.raw(".type ctab,@object")
    a.label("ctab")
    fn = [np.cos, np.sin]
    def emit(vals):
        for i in range(0, 512, 16):
            dw = [(vals[i + 2 * j] | (vals[i + 2 * j + 1] << 16)) for j in range(8)]
            a.raw(".long " + ",".join("0x%x" % d for d in dw))
    def twtab(stage, beta):
        for p in range(8):
            dws = []
            for l in range(64):
                h = l >> 5; c = l & 31
                cs = []; ss = []
                for e in range(2):
                    r = 2 * p + e
                    g, j = r >> 2, r & 3
                    if stage == 0:
                        m = c * (32 * beta + 8 * g + 4 * h + j)
                        sg = 1.0
                    else:
                        m = (c + 32 * beta) * (8 * g + 4 * h + j)
                        sg = -1.0
                    th = 2 * np.pi * (m % 2048) / 2048
                    cs.append(np.cos(th)); ss.append(sg * np.sin(th))
                dws += [f32hex(cs[0]), f32hex(cs[1]), f32hex(ss[0]), f32hex(ss[1])]
            for i in range(0, 256, 16):
                a.raw(".long " + ",".join(dws[i:i + 16]))
    for kind in range(2):
        for t in range(2):
            vals = []
            for l in range(64):
                h = l >> 5
                for i in range(8):
                    sl = 8 * (2 * t + (i >> 2)) + 4 * h + (i & 3)
                    vals.append(bf16(fn[kind](2 * np.pi * (((l & 31) * sl) % 32) / 32)))
            emit(vals)
    twtab(0, 0)
    for kind in range(2):
        for tau in range(2):
            for beta in range(2):
                for t in range(2):
                    vals = []
                    for l in range(64):
                        h = l >> 5
                        for i in range(8):
                            sl = 32 * beta + 8 * (2 * t + (i >> 2)) + 4 * h + (i & 3)
                            vals.append(bf16(fn[kind](2 * np.pi * ((((l & 31) + 32 * tau) * sl) % 64) / 64)))
                    emit(vals)
    twtab(0, 1); twtab(1, 0); twtab(1, 1)

def fr(ri, beta, t):
    r = FR + ((ri * 2 + beta) * 2 + t) * 4
    return f"v[{r}:{r+3}]"
def ng(beta, t):
    r = NG + (beta * 2 + t) * 4
    return f"v[{r}:{r+3}]"
def acc(ri, beta):
    r = AC + (ri * 2 + beta) * 16
    return f"v[{r}:{r+15}]"
def ca(idx):
    return f"v[{idx}:{idx+3}]"

def gen_fft(a):
    a("s_lshl_b32 s21, s2, 3")
    a("s_add_u32 s21, s21, s52")
    a("s_cmp_lt_u32 s21, 225")
    a("s_cselect_b32 s26, -1, 0")
    a("s_min_u32 s21, s21, 224")
    srd(a, 8, 22, WS_BYTES)
    srd(a, 12, 58, 52 * 1024)
    a("v_lshrrev_b32 v3, 5, v1")
    a("v_lshlrev_b32 v4, 4, v1")
    a("s_lshl_b32 s27, s21, 13")
    a(f"s_add_u32 s27, s27, {OFF_UF}")
    a("s_add_u32 s28, s27, 4096")
    def uload(beta):
        for ri in range(2):
            for t in range(2):
                a(f"buffer_load_dwordx4 {fr(ri,beta,t)}, v4, s[8:11], s{27+ri} offen offset:{beta*2048+t*1024}")
    uload(0)
    a("s_lshl_b32 s29, s52, 11")
    a("s_mov_b32 m0, s29")
    for i in range(2):
        a(f"buffer_load_dwordx4 v4, s[12:15], s29 offen offset:{i*1024} lds")
    uload(1)
    a("s_mov_b32 s31, 0x80008000")
    a("s_lshl_b32 s27, s21, 13")
    a(f"s_add_u32 s27, s27, {OFF_WT}")
    a("s_add_u32 s28, s27, 4096")
    a("s_mul_i32 s29, s52, 5120")
    a("s_add_u32 s29, s29, 16384")
    a("s_mov_b32 m0, s29")
    a("s_waitcnt vmcnt(4)")
    a("s_barrier")
    stamp(a, 1)
    for f in range(4):
        a(f"ds_read_b128 {ca(CK+4*f)}, v4 offset:{coff(f)}")
    for i in range(4):
        a(f"buffer_load_dwordx4 v4, s[12:15], s29 offen offset:{i*1024} lds")
    a("s_add_u32 s29, s29, 4096")
    a("s_mov_b32 m0, s29")
    a(f"buffer_load_dwordx4 v4, s[12:15], s29 offen lds")
    for i in range(8):
        a(f"v_xor_b32 v{NG+i}, s31, v{FR+i}")
    a("s_waitcnt lgkmcnt(0)")

    def fdst(ri, beta, r):
        return FR + ((ri * 2 + beta) * 2 + (r >> 3)) * 4 + ((r & 7) >> 1)
    def ndst(beta, r):
        return NG + (beta * 2 + (r >> 3)) * 4 + ((r & 7) >> 1)
    M = "v_mfma_f32_32x32x16_bf16"
    def st1(beta):
        o = []
        for t in range(2):
            z = t == 0
            o.append(f"{M} {acc(0,beta)}, {fr(0,beta,t)}, {ca(cfrag32(0,t))}, {'0' if z else acc(0,beta)}")
            o.append(f"{M} {acc(1,beta)}, {fr(1,beta,t)}, {ca(cfrag32(0,t))}, {'0' if z else acc(1,beta)}")
            o.append(f"{M} {acc(0,beta)}, {fr(1,beta,t)}, {ca(cfrag32(1,t))}, {acc(0,beta)}")
            o.append(f"{M} {acc(1,beta)}, {ng(beta,t)}, {ca(cfrag32(1,t))}, {acc(1,beta)}")
        return o
    def st2(dl, beta):
        o = []
        for t in range(2):
            z = beta == 0 and t == 0
            o.append(f"{M} {acc(0,dl)}, {ca(cfrag64(0,dl,beta,t))}, {fr(0,beta,t)}, {'0' if z else acc(0,dl)}")
            o.append(f"{M} {acc(1,dl)}, {ca(cfrag64(0,dl,beta,t))}, {fr(1,beta,t)}, {'0' if z else acc(1,dl)}")
            o.append(f"{M} {acc(0,dl)}, {ca(cfrag64(1,dl,beta,t))}, {fr(1,beta,t)}, {acc(0,dl)}")
            o.append(f"{M} {acc(1,dl)}, {ca(cfrag64(1,dl,beta,t))}, {ng(beta,t)}, {acc(1,dl)}")
        return o
    def st3(beta, dl):
        o = []
        for t in range(2):
            z = dl == 0 and t == 0
            o.append(f"{M} {acc(0,beta)}, {fr(0,dl,t)}, {ca(cfrag64(0,beta,dl,t))}, {'0' if z else acc(0,beta)}")
            o.append(f"{M} {acc(1,beta)}, {fr(1,dl,t)}, {ca(cfrag64(0,beta,dl,t))}, {'0' if z else acc(1,beta)}")
            o.append(f"{M} {acc(0,beta)}, {ng(dl,t)}, {ca(cfrag64(1,beta,dl,t))}, {acc(0,beta)}")
            o.append(f"{M} {acc(1,beta)}, {fr(0,dl,t)}, {ca(cfrag64(1,beta,dl,t))}, {acc(1,beta)}")
        return o
    def st4(beta):
        o = []
        for t in range(2):
            z = t == 0
            o.append(f"{M} {acc(0,beta)}, {fr(0,beta,t)}, {ca(cfrag32(0,t))}, {'0' if z else acc(0,beta)}")
            o.append(f"{M} {acc(1,beta)}, {fr(1,beta,t)}, {ca(cfrag32(0,t))}, {'0' if z else acc(1,beta)}")
            o.append(f"{M} {acc(0,beta)}, {ng(beta,t)}, {ca(cfrag32(1,t))}, {acc(0,beta)}")
            o.append(f"{M} {acc(1,beta)}, {fr(0,beta,t)}, {ca(cfrag32(1,t))}, {acc(1,beta)}")
        return o
    st = {"n": 0, "idx": {}}
    def emit(x):
        if isinstance(x, str):
            a(x)
            if x.startswith("ds_"):
                st["n"] += 1
        elif x[0] == "rd":
            a(x[2]); st["idx"][x[1]] = st["n"]; st["n"] += 1
        elif x[0] == "wt":
            a(f"s_waitcnt lgkmcnt({min(15, st['n'] - st['idx'][x[1]] - 1)})")
    def rd_tw(stage, beta, p):
        return ("rd", ("tw", stage, beta, p), f"ds_read_b128 v[{WV+4*p}:{WV+4*p+3}], v4 offset:{twoff(stage,beta,p)}")
    def rd_w(i):
        return ("rd", ("w", i), f"ds_read_b128 v[{WV+4*i}:{WV+4*i+3}], v6 offset:{i*1024}")
    def tw(stage, beta, nxt):
        negri = 0 if stage == 0 else 1
        gs = []
        for p in range(8):
            g = [("wt", ("tw", stage, beta, p))]
            r = 2 * p
            R = AC + beta * 16 + r
            I = AC + (2 + beta) * 16 + r
            c = WV + 4 * p; s = c + 2
            u = TMP + 4 * (p & 1); t = u + 2
            for e in range(2):
                g.append(f"v_mul_f32 v{u+e}, v{I+e}, v{c+e}")
                g.append(f"v_mul_f32 v{t+e}, v{R+e}, v{c+e}")
            for e in range(2):
                g.append(f"v_fma_f32 v{u+e}, -v{R+e}, v{s+e}, v{u+e}")
                g.append(f"v_fmac_f32 v{t+e}, v{I+e}, v{s+e}")
            if nxt is not None:
                g.append(nxt(p))
            g.append(f"v_cvt_pk_bf16_f32 v{fdst(1,beta,r)}, v{u}, v{u+1}")
            g.append(f"v_cvt_pk_bf16_f32 v{fdst(0,beta,r)}, v{t}, v{t+1}")
            x = t if negri == 0 else u
            g.append(f"v_cvt_pk_bf16_f32 v{ndst(beta,r)}, -v{x}, -v{x+1}")
            gs.append(g)
        return gs
    def wm(dl):
        gs = []
        for r in range(0, 16, 2):
            g, jp = r >> 2, (r & 3) >> 1
            R = AC + dl * 16 + r
            I = AC + (2 + dl) * 16 + r
            wr = WV + dl * 16 + 4 * g + jp
            wi = wr + 2
            c = TW + 4 * ((r >> 1) & 1); s = c + 2
            u = TMP + 4 * ((r >> 1) & 1); t = u + 2
            gg = [("wt", ("w", dl * 4 + g)),
                f"v_lshlrev_b32 v{c}, 16, v{wr}",
                f"v_and_b32 v{c+1}, 0xffff0000, v{wr}",
                f"v_lshlrev_b32 v{s}, 16, v{wi}",
                f"v_and_b32 v{s+1}, 0xffff0000, v{wi}"]
            if jp == 1:
                gg.append(rd_tw(1, 0, dl * 4 + g))
            gg += [
                f"v_mul_f32 v{u}, v{I}, v{c}", f"v_mul_f32 v{t}, v{R}, v{c}",
                f"v_mul_f32 v{u+1}, v{I+1}, v{c+1}", f"v_mul_f32 v{t+1}, v{R+1}, v{c+1}",
                f"v_fmac_f32 v{u}, v{R}, v{s}", f"v_fma_f32 v{t}, -v{I}, v{s}, v{t}",
                f"v_fmac_f32 v{u+1}, v{R+1}, v{s+1}", f"v_fma_f32 v{t+1}, -v{I+1}, v{s+1}, v{t+1}",
                f"v_cvt_pk_bf16_f32 v{fdst(1,dl,r)}, v{u}, v{u+1}",
                f"v_cvt_pk_bf16_f32 v{fdst(0,dl,r)}, v{t}, v{t+1}",
                f"v_cvt_pk_bf16_f32 v{ndst(dl,r)}, -v{u}, -v{u+1}"]
            gs.append(gg)
        return gs
    def fin(beta):
        gs = []
        for r0 in range(0, 16, 2):
            g_ = []
            for r in (r0, r0 + 1):
                g, j = r >> 2, r & 3
                R = AC + beta * 16 + r
                I = AC + (2 + beta) * 16 + r
                g_ += [f"v_cvt_pk_bf16_f32 v{R}, v{R}, v{I}",
                       f"ds_write_b32 v2, v{R} offset:{(32*beta+8*g+j)*128}"]
            gs.append(g_)
        return gs
    def mix(ms, gs=None):
        if gs is None:
            for m in ms: a(m)
            return
        gi = 0
        for i, m in enumerate(ms):
            a(m)
            if i >= 1:
                n = 1 if i < len(ms) - 1 else len(gs) - gi
                if i == 1: n = 2
                for _ in range(n):
                    if gi < len(gs):
                        for x in gs[gi]: emit(x)
                        gi += 1
        a("s_nop 1")

    a("s_lshl_b32 s29, s52, 13")
    a(f"s_add_u32 s29, s29, {ZL}")
    a("v_add_u32 v6, s29, v4")
    for i, m in enumerate(st1(0)):
        a(m)
        emit(rd_tw(0, 0, i))
        if i % 4 == 0:
            a("s_mov_b32 m0, s29")
            a("s_add_u32 s29, s29, 4096")
        a(f"buffer_load_dwordx4 v4, s[8:11], s{27+(i>>2)} offen offset:{(i&3)*1024} lds")
    a("s_waitcnt vmcnt(13)")
    for i in range(8, 16):
        a(f"v_xor_b32 v{NG+i}, s31, v{FR+i}")
    a("s_nop 1")
    stamp(a, 2)
    if common.FFT1:
        a("s_cmp_ge_u32 s52, 4")
        a("s_cbranch_scc1 F_skipA")
    mix(st1(1), tw(0, 0, None))
    a.label("F_skipA")
    a("s_waitcnt vmcnt(8)")
    a("s_barrier")
    stamp(a, 3)
    first4 = [4, 5, 12, 13]
    for f in first4:
        emit(("rd", ("c", f), f"ds_read_b128 {ca(CK+4*f)}, v4 offset:{coff(f)}"))
    for p in range(8):
        emit(rd_tw(0, 1, p))
    rest = [f for f in range(4, 20) if f not in first4]
    for f in rest:
        emit(("rd", ("c", f), f"ds_read_b128 {ca(CK+4*f)}, v4 offset:{coff(f)}"))
    emit(("wt", ("c", 13)))
    if common.FFT1:
        a("s_cmp_ge_u32 s52, 4")
        a("s_cbranch_scc1 F_skipB")
    mix(st2(0, 0), tw(0, 1, None))
    emit(("wt", ("c", rest[-1])))
    mix(st2(0, 1))
    s4 = st2(1, 0)
    mix(s4[:4])
    a("s_waitcnt vmcnt(0)")
    for p in range(8):
        emit(rd_w(p))
    mix(s4[4:])
    stamp(a, 4)
    mix(st2(1, 1), wm(0))
    mix(st3(0, 0), wm(1))
    mix(st3(0, 1) + st3(1, 0))
    stamp(a, 5)
    mix(st3(1, 1), tw(1, 0, lambda p: rd_tw(1, 1, p)))
    mix(st4(0), tw(1, 1, None))
    a("v_and_b32 v2, 31, v1")
    a("v_lshlrev_b32 v2, 2, v2")
    a("v_lshl_add_u32 v2, v3, 9, v2")
    a("s_lshl_b32 s28, s52, 13")
    a(f"s_add_u32 s28, s28, {ZL}")
    a("v_add_u32 v2, s28, v2")
    mix(st4(1), fin(0))
    stamp(a, 6)
    a("v_and_b32 v5, 31, v1")
    a("v_lshlrev_b32 v5, 2, v5")
    a("v_lshl_add_u32 v5, v3, 15, v5")
    a("s_lshl_b32 s28, s52, 7")
    a(f"s_add_u32 s28, s28, {ZL}")
    a("v_add_u32 v5, s28, v5")
    a(f"s_mul_i32 s28, s52, {NSTEP}")
    a("s_add_u32 s28, s28, s2")
    a("s_add_u32 s28, s28, 112")
    a("s_lshl_b32 s28, s28, 10")
    a(f"s_add_u32 s28, s28, {OFF_HZ}")
    a("s_nop 7")
    for g in fin(1):
        for x in g: a(x)
    a.label("F_skipB")
    a("s_waitcnt lgkmcnt(0)")
    a("s_barrier")
    for i in range(8):
        for q in range(4):
            a(f"ds_read_b32 v{FR+4*i+q}, v5 offset:{q*8192+i*1024}")
    for i in range(8):
        a(f"s_waitcnt lgkmcnt({min(28-4*i, 15)})")
        a(f"buffer_store_dwordx4 v[{FR+4*i}:{FR+4*i+3}], v4, s[8:11], s28 offen sc1")
        a(f"s_add_u32 s28, s28, {8*NSTEP*1024}")

def gen_k1(a):
    common.CUR = "k1"
    khead(a, "k1_kernel")
    a("s_cmp_ge_u32 s2, 256")
    a("s_cbranch_scc1 K1_end")
    a("s_load_dwordx4 s[12:15], s[0:1], 32")
    a("s_load_dwordx2 s[22:23], s[0:1], 72")
    a("s_load_dwordx2 s[40:41], s[0:1], 48")
    a("s_getpc_b64 s[58:59]")
    a(f"s_add_u32 s58, s58, ctab@rel32@lo+4")
    a(f"s_addc_u32 s59, s59, ctab@rel32@hi+12")
    a("v_lshrrev_b32 v1, 6, v0")
    a("s_nop 0")
    a("v_readfirstlane_b32 s52, v1")
    a("v_and_b32 v1, 63, v0")
    a("s_cmp_ge_u32 s2, 32")
    a("s_cbranch_scc1 K1_gemm")
    a("s_cmp_ge_u32 s2, 29")
    a("s_cbranch_scc1 K1_end")
    a("s_waitcnt lgkmcnt(0)")
    stamp(a, 0)
    gen_fft(a)
    stamp(a, 7)
    a("s_branch K1_fin2")
    a.label("K1_gemm")
    a("s_sub_u32 s57, s2, 32")
    a("s_lshr_b32 s54, s57, 3")
    a("s_mov_b32 s70, s54")
    a("s_and_b32 s57, s57, 7")
    if common.MAPX:
        a("s_mov_b32 s53, s54")
        a("s_mov_b32 s54, s57")
    else:
        a("s_lshr_b32 s53, s57, 1")
        a("s_mul_i32 s53, s53, 7")
        a("s_lshr_b32 s61, s54, 2")
        a("s_add_u32 s53, s53, s61")
        a("s_and_b32 s54, s54, 3")
        a("s_and_b32 s57, s57, 1")
        a("s_lshl_b32 s57, s57, 2")
        a("s_add_u32 s54, s54, s57")
    a("s_lshl_b32 s55, s54, 3")
    a("s_add_u32 s55, s55, s52")
    a("s_waitcnt lgkmcnt(0)")
    stamp(a, 0)
    srd(a, 36, 22, WS_BYTES)
    a("s_and_b32 s62, s52, 1")
    a("s_cmp_eq_u32 s62, 0")
    a("s_cselect_b32 s28, s12, s14")
    a("s_cselect_b32 s29, s13, s15")
    a("s_and_b32 s29, s29, 0xffff")
    a(f"s_mov_b32 s30, {D*F*2}")
    a("s_mov_b32 s31, 0x00020000")
    a("s_lshl_b32 s57, s53, 7")
    a("v_lshlrev_b32 v2, 4, v1")
    a(f"s_mul_i32 s68, s55, {28*1024}")
    a(f"s_add_u32 s68, s68, {OFF_XNF}")
    a("v_lshrrev_b32 v3, 3, v1")
    a("v_and_b32 v4, 7, v1")
    a("v_bfe_u32 v5, v3, 1, 1")
    a("v_lshlrev_b32 v5, 2, v5")
    a("v_xor_b32 v4, v4, v5")
    a("s_lshr_b32 s63, s52, 1")
    a("s_lshl_b32 s64, s63, 3")
    a("v_add_u32 v3, s64, v3")
    a("s_movk_i32 s56, 3584")
    a("v_mul_lo_u32 v3, v3, s56")
    a("v_lshl_add_u32 v3, v4, 4, v3")
    a("v_add_u32 v3, s57, v3")
    a("s_mul_i32 s65, s62, 57344")
    a("s_lshl_b32 s64, s63, 10")
    a("s_add_u32 s65, s65, s64")
    a("s_lshr_b32 s72, s70, 2")
    a("s_and_b32 s73, s70, 3")
    a("s_lshl_b32 s73, s73, 1")
    a("s_add_u32 s72, s72, s73")
    a("s_cmp_ge_u32 s72, 7")
    a("s_cselect_b32 s73, 7, 0")
    a("s_sub_u32 s72, s72, s73")
    a("s_mov_b32 s72, 0")
    a(f"s_mul_i32 s67, s72, {2*3584*32}")
    a("s_lshl_b32 s72, s72, 12")
    a("s_add_u32 s68, s68, s72")
    vm = {"n": 0, "last": {}}
    def chunk_ops(c):
        ops = []
        for i in range(2):
            ops.append(["s_mov_b32 m0, s65", "s_add_u32 s65, s65, 4096",
                        "buffer_load_dwordx4 v3, s[28:31], s67 offen lds", f"s_add_u32 s67, s67, {3584*32}"])
        for t in range(4 * c, 4 * c + 4):
            o = [f"buffer_load_dwordx4 v[{XF+4*t}:{XF+4*t+3}], v2, s[36:39], s68 offen offset:{(t&3)*1024}"]
            if t & 3 == 3:
                o.append("s_add_u32 s68, s68, 4096")
            ops.append(o)
        return [(c, o) for o in ops]
    def vissue(co):
        c, o = co
        for x in o: a(x)
        vm["n"] += 1
        vm["last"][c] = vm["n"]
    def vwait(c):
        a(f"s_waitcnt vmcnt({vm['n'] - vm['last'][c]})")
    def chunk(c):
        for co in chunk_ops(c): vissue(co)
    chunk(0)
    a("v_lshrrev_b32 v4, 5, v1")
    a("v_bfe_u32 v5, v1, 2, 2")
    a("v_lshl_add_u32 v4, v4, 3, v5")
    a("v_lshlrev_b32 v4, 7, v4")
    a("v_bfe_u32 v6, v1, 4, 1")
    a("v_bfe_u32 v7, v1, 1, 1")
    a("v_lshl_add_u32 v6, v6, 1, v7")
    a("v_lshrrev_b32 v7, 1, v5")
    a("v_lshlrev_b32 v7, 2, v7")
    a("v_xor_b32 v6, v6, v7")
    a("v_lshl_add_u32 v4, v6, 4, v4")
    a("v_and_b32 v7, 1, v1")
    a("v_lshl_add_u32 v4, v7, 3, v4")
    a("v_xor_b32 v5, 64, v4")
    a("v_add_u32 v6, 57344, v4")
    a("v_add_u32 v7, 57344, v5")

    def trreads(t):
        bs = BF + 16 * (t & 1)
        for j in range(4):
            for q in range(2):
                a(f"ds_read_b64_tr_b16 v[{bs+4*j+2*q}:{bs+4*j+2*q+1}], v{4+j} offset:{t*2048+q*512}")

    a("s_waitcnt vmcnt(3)")
    for c in range(1, PRE):
        chunk(c)
    stamp(a, 1)
    vwait(0)
    a("s_barrier")
    stamp(a, 2)
    trreads(0)
    pend = []
    if common.PF3:
        a("s_and_b32 s41, s41, 0xffff")
        a(f"s_mov_b32 s42, {F*D*2}")
        a("s_mov_b32 s43, 0x00020000")
        a("s_getpc_b64 s[44:45]")
        a("s_add_u32 s44, s44, gdftab@rel32@lo+4")
        a("s_addc_u32 s45, s45, gdftab@rel32@hi+12")
        a("s_and_b32 s45, s45, 0xffff")
        a(f"s_mov_b32 s46, {14*29*1024}")
        a("s_mov_b32 s47, 0x00020000")
        a("s_getpc_b64 s[48:49]")
        a("s_add_u32 s48, s48, k3_kernel@rel32@lo+4")
        a("s_addc_u32 s49, s49, k3_kernel@rel32@hi+12")
        a("s_and_b32 s49, s49, 0xffff")
        a("s_mov_b32 s50, K3_end-k3_kernel")
        a("s_mov_b32 s51, 0x00020000")
        a("s_lshl_b32 s74, s70, 3")
        a("s_add_u32 s74, s74, s52")
        a("s_mul_i32 s75, s74, 7168")
        a("s_lshl_b32 s76, s74, 11")
        a("s_lshl_b32 s74, s74, 10")
    def pf_ops():
        ops = [["buffer_load_dwordx4 v[16:19], v2, s[48:51], s74 offen"]]
        for i in range(7):
            o = [f"buffer_load_dwordx4 v[16:19], v2, s[40:43], s75 offen offset:{(i&3)*1024}"]
            if i == 3:
                o.append("s_add_u32 s75, s75, 4096")
            ops.append(o)
        for i in range(2):
            ops.append([f"buffer_load_dwordx4 v[16:19], v2, s[44:47], s76 offen offset:{i*1024}"])
        return [(99, o) for o in ops]
    for t in range(28):
        if t % 4 == 0 and t // 4 + PRE < 7:
            pend = chunk_ops(t // 4 + PRE)
        if t == 20 and common.PF3:
            pend = pf_ops()
        if t + 1 < 28:
            if (t + 1) % 4 == 0:
                vwait((t + 1) // 4)
                a("s_barrier")
            trreads(t + 1)
            a("s_waitcnt lgkmcnt(8)")
        else:
            a("s_waitcnt lgkmcnt(0)")
        bs = BF + 16 * (t & 1)
        xf = XF + 4 * t
        for j in range(4):
            ac = f"v[{ACC+16*j}:{ACC+16*j+15}]"
            cin = "0" if t == 0 else ac
            a(f"v_mfma_f32_32x32x16_bf16 {ac}, v[{bs+4*j}:{bs+4*j+3}], v[{xf}:{xf+3}], {cin}")
            if pend and (j == 1 or (j == 3 and (t % 4 < 2 or t >= 20))):
                vissue(pend.pop(0))
    stamp(a, 3)
    a(f"s_mov_b32 s61, {f32hex(C1)}")
    a(f"s_mov_b32 s62, {f32hex(C2)}")
    a(f"s_mul_i32 s63, s55, {NSTEP}")
    a("s_lshl_b32 s64, s53, 2")
    a("s_add_u32 s63, s63, s64")
    a("s_lshl_b32 s63, s63, 10")
    a(f"s_add_u32 s63, s63, {OFF_HZ}")
    a("v_mov_b32 v15, s61")
    a("s_nop 7")
    for jj in range(2):
        for r in range(0, 16, 4):
            tm = [8, 9, 10, 11]
            gs = [ACC + 16 * jj + r + e for e in range(4)]
            us = [ACC + 16 * (2 + jj) + r + e for e in range(4)]
            for e in range(4):
                a(f"v_mul_f32 v{tm[e]}, v{gs[e]}, v{gs[e]}")
            for e in range(4):
                a(f"v_fma_f32 v{tm[e]}, v{tm[e]}, s62, v15")
            for e in range(4):
                a(f"v_mul_f32 v{tm[e]}, v{tm[e]}, v{gs[e]}")
            for e in range(4):
                a(f"v_exp_f32 v{tm[e]}, v{tm[e]}")
            for e in range(4):
                a(f"v_mul_f32 v{gs[e]}, v{gs[e]}, v{us[e]}")
            for e in range(4):
                a(f"v_add_f32 v{tm[e]}, 1.0, v{tm[e]}")
            for e in range(4):
                a(f"v_rcp_f32 v{tm[e]}, v{tm[e]}")
            a("s_nop 0")
            for e in range(4):
                a(f"v_mul_f32 v{tm[e]}, v{tm[e]}, v{gs[e]}")
            a(f"v_cvt_pk_bf16_f32 v{BF + jj*8 + r//2}, v8, v9")
            a(f"v_cvt_pk_bf16_f32 v{BF + jj*8 + r//2 + 1}, v10, v11")
        for t in range(2):
            a(f"buffer_store_dwordx4 v[{BF+jj*8+4*t}:{BF+jj*8+4*t+3}], v2, s[36:39], s63 offen offset:{(2*jj+t)*1024} sc1")
    a.label("K1_fin")
    stamp(a, 4)
    a.label("K1_fin2")
    stamp_flush(a, 8, 52)
    a.label("K1_end")
    a("s_endpgm")
```

```python
import sys
from common import *
import k0, k1, k3

def gen_t1(a):
    a.raw(".p2align 8")
    for j in range(448):
        a.raw(f".set tc{j}, 0x{bf16(np.cos(2*np.pi*j/448)):04x}")
    a.raw(""".altmacro
.macro t1emit i
.short tc\\i
.endm
.p2align 8
.type t1tab,@object
t1tab:
.set t1_ct, 0
.rept 8
.set t1_p, 0
.rept 2
.set t1_t, 0
.rept 14
.set t1_l, 0
.rept 64
.set t1_n, 32*t1_ct + (t1_l & 31)
.set t1_d, 2*(16*t1_t + 8*(t1_l >> 5)) + t1_p
.rept 8
.if t1_n < 226
t1emit %((t1_d * (t1_n >> 1) + 112 * (t1_n & 1)) % 448)
.else
.short 0
.endif
.set t1_d, t1_d + 2
.endr
.set t1_l, t1_l + 1
.endr
.set t1_t, t1_t + 1
.endr
.set t1_p, t1_p + 1
.endr
.set t1_ct, t1_ct + 1
.endr
.noaltmacro""")

def gen_gdf(a):
    for j in range(448):
        a.raw(f".set tg2_{j}, 0x{bf16(np.cos(2*np.pi*j/448)*2.0/(448*2048)):04x}")
        a.raw(f".set tg1_{j}, 0x{bf16(np.cos(2*np.pi*j/448)*1.0/(448*2048)):04x}")
    a.raw(""".altmacro
.macro gdemit i
.short tg2_\\i
.endm
.macro gdemit1 i
.short tg1_\\i
.endm
.p2align 8
.type gdftab,@object
gdftab:
.set gd_db, 0
.rept 14
.set gd_t3, 0
.rept 29
.set gd_l, 0
.rept 64
.set gd_d, 32*gd_db + (gd_l & 31)
.set gd_kk, 16*gd_t3 + 8*(gd_l >> 5)
.rept 8
.if (gd_kk < 2) || ((gd_kk >= 448) && (gd_kk < 450))
gdemit1 %((gd_d * (gd_kk >> 1) + 112 * (gd_kk & 1)) % 448)
.elseif gd_kk < 450
gdemit %((gd_d * (gd_kk >> 1) + 112 * (gd_kk & 1)) % 448)
.else
.short 0
.endif
.set gd_kk, gd_kk + 1
.endr
.set gd_l, gd_l + 1
.endr
.set gd_t3, gd_t3 + 1
.endr
.set gd_db, gd_db + 1
.endr
.noaltmacro""")

def main(out):
    import common
    if len(sys.argv) > 2:
        common.STAMP = sys.argv[2]
    hdr = open("parallel_sum__spectral_gfnet__glu_gated_geglu__prompt.s.ref").read().split("; Override")[0]
    a = Asm()
    a.raw(hdr.rstrip())
    a.raw(f"; @launch kernel=k0_kernel grid=(256,1,1) block=(576,1,1) lds={k0.K0_LDS}")
    a.raw(f"; @launch kernel=k1_kernel grid=(256,1,1) block=(512,1,1) lds={k1.K1_LDS}")
    a.raw(f"; @launch kernel=k3_kernel grid=(224,1,1) block=(256,1,1) lds={k3.K3_LDS}")
    a.raw('.amdgcn_target "amdgcn-amd-amdhsa--gfx950"')
    a.raw(".text")
    k0.gen_k0(a, "t1tab", "gdftab")
    k1.gen_k1(a)
    k3.gen_k3(a, "gdftab")
    a.raw('.section .rodata,"a"')
    a.raw(".p2align 6")
    a.raw(kd("k0_kernel", 168, 96))
    a.raw(kd("k1_kernel", 256, 96))
    a.raw(kd("k3_kernel", 256, 96))
    gen_t1(a)
    gen_gdf(a)
    k1.gen_ctab(a)
    open(out, "w").write(a.text())

if __name__ == "__main__":
    main(sys.argv[1] if len(sys.argv) > 1 else "parallel_sum__spectral_gfnet__glu_gated_geglu__prompt.s")
```

```python
import numpy as np

S, D, F, NK = 2048, 448, 1792, 225
NT3 = 29
NSTEP = 112 + NT3
OFF_HZ = 0
SZ_HZ = 64 * NSTEP * 1024
OFF_WDF = OFF_HZ + SZ_HZ
SZ_WDF = 14 * NSTEP * 1024
OFF_WT = OFF_WDF + SZ_WDF
SZ_WT = 226 * 8192
OFF_UF = OFF_WT + SZ_WT
SZ_UF = 512 * 64 * 64
WS_BYTES = 268435456

def bf16(x):
    u = int(np.float32(x).view(np.uint32))
    return ((u + 0x7FFF + ((u >> 16) & 1)) >> 16) & 0xFFFF

def f32hex(x):
    return "0x%08x" % int(np.float32(x).view(np.uint32))

class Asm:
    def __init__(self):
        self.l = []
    def __call__(self, s):
        self.l.append("    " + s)
    def label(self, s):
        self.l.append(s + ":")
    def raw(self, s):
        self.l.append(s)
    def c(self, s):
        self.l.append("    ; " + s)
    def text(self):
        return "\n".join(self.l) + "\n"

def srd(a, sd, ptr_lo, nbytes):
    a(f"s_mov_b32 s{sd}, s{ptr_lo}")
    a(f"s_and_b32 s{sd+1}, s{ptr_lo+1}, 0xffff")
    a(f"s_mov_b32 s{sd+2}, {nbytes}")
    a(f"s_mov_b32 s{sd+3}, 0x00020000")

def kd(name, vgpr, sgpr, accum=None):
    if accum is None:
        accum = (vgpr + 3) // 4 * 4
    return f""".amdhsa_kernel {name}
  .amdhsa_next_free_vgpr {vgpr}
  .amdhsa_next_free_sgpr {sgpr}
  .amdhsa_accum_offset {accum}
  .amdhsa_group_segment_fixed_size 0
  .amdhsa_kernarg_size 80
  .amdhsa_user_sgpr_count 2
  .amdhsa_user_sgpr_kernarg_segment_ptr 1
  .amdhsa_system_sgpr_workgroup_id_x 1
.end_amdhsa_kernel
"""

def khead(a, name):
    a.raw(f".globl {name}")
    a.raw(".p2align 8")
    a.raw(f".type {name},@function")
    a.label(name)

STAMP = False
CUR = None
import os
MAPX = bool(os.environ.get('MAPX'))
PFW = bool(int(os.environ.get('PFW', '0')))
ROT1 = bool(int(os.environ.get('ROT1', '0')))
PFB = bool(int(os.environ.get('PFB', '1')))
FFT1 = bool(int(os.environ.get('FFT1', '0')))
PF3 = bool(int(os.environ.get('PF3', '1')))
XBAR = bool(int(os.environ.get('XBAR', '1')))
NPRE = int(os.environ.get('NPRE', '8'))
PF3T = int(os.environ.get('PF3T', '0'))
NS3 = int(os.environ.get('NS3', '16'))
K3N0 = int(os.environ.get('K3N0', '33'))
K3SC = int(os.environ.get('K3SC', '1'))
WPOS = int(os.environ.get('WPOS', '0'))
USLP = int(os.environ.get('USLP', '6'))
IDLEPF = int(os.environ.get('IDLEPF', '0'))
NF1 = int(os.environ.get('NF1', '14'))
NPF = int(os.environ.get('NPF', '14'))
PRE1 = int(os.environ.get('PRE1', '2'))
T1HI = float(os.environ.get('T1HI', '0.6'))
PFLO = float(os.environ.get('PFLO', '0.3'))
PFD0 = bool(int(os.environ.get('PFD0', '1')))
NOSIDE = bool(os.environ.get('NOSIDE'))
def stamp(a, i):
    if globals()['STAMP'] and globals()['STAMP'] == globals()['CUR']:
        a("s_memtime s[80:81]")
        a("s_waitcnt lgkmcnt(0)")
        a(f"s_mov_b32 s{84+i}, s80")
        if i == 0:
            a("s_memrealtime s[80:81]")
            a("s_waitcnt lgkmcnt(0)")
            a(f"s_mov_b32 s94, s80")

def stamp_flush(a, n, wave_sreg):
    if globals()['STAMP'] and globals()['STAMP'] == globals()['CUR']:
        a("s_load_dwordx2 s[80:81], s[0:1], 72")
        a("s_waitcnt lgkmcnt(0)")
        a("s_and_b32 s81, s81, 0xffff")
        a("s_mov_b32 s82, 0x10000000")
        a("s_mov_b32 s83, 0x00020000")
        a("s_lshl_b32 s79, s2, 4")
        a(f"s_add_u32 s79, s79, s{wave_sreg}")
        a("s_lshl_b32 s79, s79, 6")
        a(f"s_add_u32 s79, s79, {OFF_DBG}")
        a("v_mov_b32 v120, 0")
        a("s_memrealtime s[76:77]")
        a("s_waitcnt lgkmcnt(0)")
        a("v_mov_b32 v121, s94")
        a("buffer_store_dword v121, v120, s[80:83], s79 offen offset:56")
        a("v_mov_b32 v121, s76")
        a("buffer_store_dword v121, v120, s[80:83], s79 offen offset:60")
        for i in range(n):
            a(f"v_mov_b32 v121, s{84+i}")
            a(f"buffer_store_dword v121, v120, s[80:83], s79 offen offset:{4*i}")
OFF_DBG = 64 << 20
OFF_XNF = OFF_UF + SZ_UF
SZ_XNF = 64 * 28 * 1024
```

```python
from common import *
import common

XCH = 32 * 912
K0_LDS = XCH + 8 * 4352
TB = 96
ACC0 = 128
AF = 192
RD = 96
SL = 40
SO = 72
RAW = 40
FV = 56

def gen_k0(a, tabsym, gdsym):
    common.CUR = "k0"
    khead(a, "k0_kernel")
    a("s_cmp_ge_u32 s2, 256")
    a("s_cbranch_scc1 K0_end")
    a("s_load_dwordx16 s[4:19], s[0:1], 0")
    a("s_load_dwordx4 s[20:23], s[0:1], 64")
    a("s_getpc_b64 s[58:59]")
    a(f"s_add_u32 s58, s58, {tabsym}@rel32@lo+4")
    a(f"s_addc_u32 s59, s59, {tabsym}@rel32@hi+12")
    a("s_getpc_b64 s[56:57]")
    a(f"s_add_u32 s56, s56, {gdsym}@rel32@lo+4")
    a(f"s_addc_u32 s57, s57, {gdsym}@rel32@hi+12")
    a("v_lshrrev_b32 v1, 6, v0")
    a("s_nop 0")
    a("v_readfirstlane_b32 s52, v1")
    a("v_and_b32 v1, 63, v0")
    a("v_lshlrev_b32 v2, 4, v1")
    a("s_cmp_lg_u32 s52, 8")
    a("s_cbranch_scc1 K0_npf")
    a("s_mov_b32 s35, 0x00020000")
    a("s_getpc_b64 s[32:33]")
    a("s_add_u32 s32, s32, k0_kernel@rel32@lo+4")
    a("s_addc_u32 s33, s33, k0_kernel@rel32@hi+12")
    a("s_and_b32 s33, s33, 0xffff")
    a("s_mov_b32 s34, K3_end-k0_kernel")
    a("s_lshr_b32 s67, s2, 3")
    a("s_lshl_b32 s67, s67, 10")
    a("buffer_load_dwordx4 v[32:35], v2, s[32:35], s67 offen")
    a.label("K0_npf")
    a("s_bfe_u32 s53, s2, 0x20003")
    a("s_lshr_b32 s54, s2, 5")
    a("s_lshl_b32 s54, s54, 3")
    a("s_and_b32 s55, s2, 7")
    a("s_add_u32 s54, s54, s55")
    a("s_lshr_b32 s65, s54, 5")
    a("s_lshl_b32 s65, s65, 4")
    a("s_bfe_u32 s66, s54, 0x10004")
    a("s_lshl_b32 s66, s66, 2")
    a("s_add_u32 s65, s65, s66")
    a("s_lshr_b32 s66, s52, 2")
    a("s_lshl_b32 s66, s66, 3")
    a("s_and_b32 s67, s52, 3")
    a("s_add_u32 s66, s66, s67")
    a("s_add_u32 s55, s65, s66")
    a("s_lshl_b32 s55, s55, 4")
    a("s_and_b32 s68, s54, 15")
    a("s_add_u32 s55, s55, s68")
    a(f"s_mul_i32 s55, s55, {4*896}")
    a("s_mov_b32 s60, 0x3f803f80")
    for i in range(16):
        a(f"v_mov_b32 v{RAW+i}, 0")
    a("v_lshlrev_b32 v2, 4, v1")
    a("s_waitcnt lgkmcnt(0)")
    stamp(a, 0)
    srd(a, 24, 4, S * D * 2)
    a("s_cmp_eq_u32 s52, 8")
    a("s_cbranch_scc1 K0_nox")
    a("s_mov_b32 exec_hi, 0x00ffffff")
    for r in range(4):
        a(f"buffer_load_dwordx4 v[{RAW+4*r}:{RAW+4*r+3}], v2, s[24:27], s55 offen offset:{896*r}")
    a("s_mov_b32 exec_hi, -1")
    a.label("K0_nox")
    srd(a, 36, 22, WS_BYTES)
    srd(a, 40, 6, S * NK * 2)
    srd(a, 44, 8, S * NK * 2)
    srd(a, 48, 16, F * D * 2)
    srd(a, 28, 58, 8 * 28 * 1024)
    a("v_lshrrev_b32 v7, 5, v1")
    a("v_min_u32 v18, 55, v1")
    a("v_lshlrev_b32 v18, 4, v18")
    if common.XBAR:
        a("s_barrier")
    main = a
    a = Asm()
    SUM = [8, 9, 10, 11]
    T2 = [12, 13, 14, 15]
    MB = [88, 90, 92, 94]
    MB2 = [89, 91, 93, 95]
    VR = [20, 21, 22, 23]
    T2P = [24, 26, 28, 30]
    R4 = range(4)
    for r in R4:
        a(f"v_dot2_f32_bf16 v{SUM[r]}, v{RAW+4*r}, s60, 0")
        a(f"v_dot2_f32_bf16 v{T2[r]}, v{RAW+4*r+1}, s60, 0")
    for r in R4:
        a(f"v_dot2_f32_bf16 v{SUM[r]}, v{RAW+4*r+2}, s60, v{SUM[r]}")
        a(f"v_dot2_f32_bf16 v{T2[r]}, v{RAW+4*r+3}, s60, v{T2[r]}")
    a("s_nop 3")
    for r in R4:
        a(f"v_add_f32 v{SUM[r]}, v{SUM[r]}, v{T2[r]}")
    def reduce4(vs, sd):
        a("s_nop 1")
        for sh in (1, 2, 4, 8):
            for v in vs:
                a(f"v_add_f32_dpp v{v}, v{v}, v{v} row_shr:{sh} row_mask:0xf bank_mask:0xf bound_ctrl:0")
        for v in vs:
            a(f"v_add_f32_dpp v{v}, v{v}, v{v} row_bcast:15 row_mask:0xa bank_mask:0xf")
        for v in vs:
            a(f"v_add_f32_dpp v{v}, v{v}, v{v} row_bcast:31 row_mask:0xc bank_mask:0xf")
        for i, v in enumerate(vs):
            a(f"v_readlane_b32 s{sd+i}, v{v}, 63")
        a("s_nop 1")
    reduce4(SUM, 61)
    for r in R4:
        a(f"v_mov_b32 v{SUM[r]}, s{61+r}")
    for r in R4:
        a(f"v_mul_f32 v{SUM[r]}, {f32hex(1.0/448)}, v{SUM[r]}")
    for r in R4:
        a(f"v_cvt_pk_bf16_f32 v{MB[r]}, v{SUM[r]}, v{SUM[r]}")
    for r in R4:
        a(f"v_and_b32 v{MB[r]}, 0xffff0000, v{MB[r]}")
    for r in R4:
        for i in range(4):
            a(f"v_lshlrev_b32 v{FV+8*r+2*i}, 16, v{RAW+4*r+i}")
            a(f"v_and_b32 v{FV+8*r+2*i+1}, 0xffff0000, v{RAW+4*r+i}")
        a(f"v_mov_b32 v{MB2[r]}, v{MB[r]}")
        for i in range(0, 8, 2):
            a(f"v_pk_add_f32 v[{FV+8*r+i}:{FV+8*r+i+1}], v[{FV+8*r+i}:{FV+8*r+i+1}], v[{MB[r]}:{MB2[r]}] neg_lo:[0,1] neg_hi:[0,1]")
        a(f"v_pk_mul_f32 v[{T2P[r]}:{T2P[r]+1}], v[{FV+8*r}:{FV+8*r+1}], v[{FV+8*r}:{FV+8*r+1}]")
        for i in range(2, 8, 2):
            a(f"v_pk_fma_f32 v[{T2P[r]}:{T2P[r]+1}], v[{FV+8*r+i}:{FV+8*r+i+1}], v[{FV+8*r+i}:{FV+8*r+i+1}], v[{T2P[r]}:{T2P[r]+1}]")
        a(f"v_add_f32 v{VR[r]}, v{T2P[r]}, v{T2P[r]+1}")
    a("v_cmp_gt_u32 vcc, 56, v1")
    a("s_nop 1")
    for r in R4:
        a(f"v_cndmask_b32 v{VR[r]}, 0, v{VR[r]}, vcc")
    reduce4(VR, 61)
    for r in R4:
        a(f"v_mov_b32 v{VR[r]}, s{61+r}")
    def each(fmt):
        for r in R4:
            a(fmt.format(v=VR[r], m=SUM[r], mb=MB[r], t=T2[r]))
    each("v_mul_f32 v{v}, " + f32hex(1.0/448) + ", v{v}")
    each("v_sub_f32 v{t}, v{m}, v{mb}")
    each("v_fma_f32 v{v}, -v{t}, v{t}, v{v}")
    each("v_max_f32 v{v}, 0, v{v}")
    each("v_cvt_pk_bf16_f32 v{v}, v{v}, v{v}")
    each("v_and_b32 v{v}, 0xffff0000, v{v}")
    each("v_add_f32 v{v}, " + f32hex(1e-5) + ", v{v}")
    each("v_cvt_pk_bf16_f32 v{v}, v{v}, v{v}")
    each("v_and_b32 v{v}, 0xffff0000, v{v}")
    each("v_sqrt_f32 v{v}, v{v}")
    a("s_nop 0")
    each("v_cvt_pk_bf16_f32 v{v}, v{v}, v{v}")
    each("v_and_b32 v{v}, 0xffff0000, v{v}")
    each("v_rcp_f32 v{t}, v{v}")
    a(f"s_mul_i32 s61, s52, 912")
    a("v_lshlrev_b32 v3, 3, v1")
    a("v_add_u32 v3, s61, v3")
    for r in R4:
        for i in range(4):
            a(f"v_cvt_pk_bf16_f32 v{RAW+4*r+i}, v{FV+8*r+2*i}, v{FV+8*r+2*i+1}")
        for i in range(4):
            a(f"v_lshlrev_b32 v{FV+8*r+2*i}, 16, v{RAW+4*r+i}")
            a(f"v_and_b32 v{FV+8*r+2*i+1}, 0xffff0000, v{RAW+4*r+i}")
        a(f"v_mov_b32 v{MB[r]}, v{T2[r]}")
        a(f"v_mov_b32 v{MB2[r]}, v{T2[r]}")
        for i in range(0, 8, 2):
            a(f"v_pk_mul_f32 v[{FV+8*r+i}:{FV+8*r+i+1}], v[{FV+8*r+i}:{FV+8*r+i+1}], v[{MB[r]}:{MB2[r]}]")
        for i in range(4):
            a(f"v_cvt_pk_bf16_f32 v{RAW+4*r+i}, v{FV+8*r+2*i}, v{FV+8*r+2*i+1}")
        a(f"v_perm_b32 v{FV+8*r}, v{RAW+4*r+1}, v{RAW+4*r}, s70")
        a(f"v_perm_b32 v{FV+8*r+1}, v{RAW+4*r+3}, v{RAW+4*r+2}, s70")
        a(f"v_perm_b32 v{FV+8*r+2}, v{RAW+4*r+1}, v{RAW+4*r}, s71")
        a(f"v_perm_b32 v{FV+8*r+3}, v{RAW+4*r+3}, v{RAW+4*r+2}, s71")
        a("s_mov_b32 exec_hi, 0x00ffffff")
        a(f"ds_write_b64 v3, v[{FV+8*r}:{FV+8*r+1}] offset:{r*7296}")
        a(f"ds_write_b64 v3, v[{FV+8*r+2}:{FV+8*r+3}] offset:{r*7296+448}")
        a("s_mov_b32 exec_hi, -1")
    ln = [x.strip() for x in a.l]
    a = main
    def emit_ln(mem, lo=0.0, hi=0.9, post=()):
        n = len(ln)
        pos = [int(n * (lo + (hi - lo) * (i + 0.5) / max(1, len(mem)))) for i in range(len(mem))]
        mi = 0
        masked = False
        for i, x in enumerate(ln):
            a(x)
            if x.startswith("s_mov_b32 exec_hi"):
                masked = not x.endswith("-1")
            while mi < len(mem) and pos[mi] <= i and not masked:
                for y in mem[mi]: a(y)
                mi += 1
        assert mi == len(mem)
        for y in post: a(y)
        a("s_branch K0_ln3")
    a("s_mov_b32 s70, 0x05040100")
    a("s_mov_b32 s71, 0x07060302")
    a("s_cmp_eq_u32 s52, 8")
    a("s_cbranch_scc1 K0_w8")
    a("s_and_b32 s73, s52, 1")
    a("s_bfe_u32 s74, s52, 0x10001")
    a("s_lshr_b32 s75, s52, 2")
    a("s_lshl_b32 s76, s53, 1")
    a("s_add_u32 s76, s76, s73")
    a("s_lshl_b32 s77, s76, 1")
    a("s_add_u32 s77, s77, s74")
    a("s_lshl_b32 s77, s77, 1")
    a("s_add_u32 s77, s77, s75")
    a(f"s_mul_i32 s77, s77, {7*1024}")
    for t in range(7):
        a(f"buffer_load_dwordx4 v[{TB+4*t}:{TB+4*t+3}], v2, s[28:31], s77 offen offset:{(t&3)*1024}")
        if t == 3:
            a("s_add_u32 s77, s77, 4096")
    a("v_and_b32 v4, 31, v1")
    a("s_movk_i32 s61, 912")
    a("v_mul_lo_u32 v4, v4, s61")
    a("v_lshrrev_b32 v5, 4, v1")
    a("v_and_b32 v6, 7, v1")
    a("v_lshl_add_u32 v8, v5, 3, v6")
    a("v_mul_lo_u32 v8, v8, s61")
    a("v_and_b32 v9, 8, v1")
    a("v_add_u32 v8, v8, v9")
    a(f"v_mul_u32_u24 v5, {28*1024}, v5")
    a("v_lshl_add_u32 v5, v9, 6, v5")
    a("v_and_b32 v9, 4, v6")
    a("v_lshl_add_u32 v5, v9, 5, v5")
    a("v_and_b32 v9, 3, v6")
    a("v_lshl_add_u32 v16, v9, 4, v5")
    a("v_mov_b32 v5, v8")
    a("v_lshl_add_u32 v4, v7, 4, v4")
    a("s_mul_i32 s61, s74, 448")
    a("s_mul_i32 s62, s75, 224")
    a("s_add_u32 s61, s61, s62")
    a("v_add_u32 v4, s61, v4")
    a("s_mul_i32 s61, s53, 7")
    a("s_add_u32 s61, s61, s52")
    a("s_lshl_b32 s63, s61, 4")
    a("v_add_u32 v5, s63, v5")
    a("s_mul_i32 s69, s68, 112")
    a("s_add_u32 s69, s69, s61")
    a("s_lshl_b32 s69, s69, 10")
    a("s_lshl_b32 s62, s65, 4")
    a("s_add_u32 s69, s69, s62")
    a(f"s_add_u32 s69, s69, {OFF_XNF}")
    a("s_mul_i32 s61, s52, 4352")
    a(f"s_add_u32 s61, s61, {XCH}")
    a("v_add_u32 v17, s61, v2")
    a("v_and_b32 v13, 3, v1")
    a("v_lshrrev_b32 v15, 2, v1")
    a("s_lshl_b32 s62, s75, 4")
    a("v_add_u32 v15, s62, v15")
    a("v_mul_u32_u24 v32, 1088, v13")
    a("v_lshl_add_u32 v32, v15, 4, v32")
    a("s_mul_i32 s61, s73, 4352")
    a(f"s_add_u32 s61, s61, {XCH}")
    a("v_add_u32 v32, s61, v32")
    a("v_and_b32 v14, 1, v15")
    a("v_and_b32 v15, 30, v15")
    a("s_lshl_b32 s61, s76, 5")
    a("v_add_u32 v15, s61, v15")
    a("s_lshl_b32 s63, s74, 1")
    a("s_sub_u32 s63, 224, s63")
    a("s_cmp_eq_u32 s74, 0")
    a("s_cselect_b32 s61, 1, -1")
    a("s_cselect_b32 s62, 0, 448")
    a("s_cselect_b32 s64, 0, 0x80000000")
    a("v_mul_lo_u32 v19, v15, s61")
    a("v_add_u32 v19, s62, v19")
    a("v_add_u32 v19, v19, v14")
    a("v_lshlrev_b32 v19, 12, v19")
    a("v_lshl_add_u32 v19, v13, 4, v19")
    a("v_lshlrev_b32 v9, 31, v14")
    a("v_and_b32 v9, s64, v9")
    a("v_xor_b32 v33, 1.0, v9")
    a("v_xor_b32 v34, s64, v33")
    a("s_lshr_b32 s61, s68, 3")
    a("s_lshl_b32 s61, s61, 11")
    a("s_and_b32 s62, s68, 7")
    a("s_lshl_b32 s62, s62, 6")
    a("s_add_u32 s61, s61, s62")
    a("s_lshr_b32 s62, s54, 4")
    a("s_lshl_b32 s62, s62, 9")
    a("s_add_u32 s61, s61, s62")
    a(f"s_add_u32 s72, s61, {OFF_UF}")
    a("v_cmp_ge_u32 s[78:79], s63, v15")
    a("s_waitcnt vmcnt(7)")
    stamp(a, 1)
    emit_ln([], 0, 1, ["s_waitcnt vmcnt(0)"])
    a.label("K0_w8")
    a("v_and_b32 v5, 7, v1")
    a("v_and_b32 v6, 56, v1")
    a("s_and_b32 s66, s2, 3")
    a("s_lshl_b32 s66, s66, 6")
    a("v_add_u32 v6, s66, v6")
    a("v_min_u32 v6, 217, v6")
    a("s_lshr_b32 s66, s2, 4")
    a("s_bfe_u32 s67, s2, 0x20002")
    a("s_lshl_b32 s67, s67, 3")
    a("s_lshl_b32 s72, s66, 5")
    a("s_add_u32 s72, s72, s67")
    a("s_lshl_b32 s72, s72, 4")
    a(f"s_add_u32 s72, s72, {OFF_WT-8192}")
    a("s_lshl_b32 s66, s66, 7")
    a("s_add_u32 s66, s66, s67")
    a("s_mul_i32 s66, s66, 450")
    a("v_mul_u32_u24 v16, 450, v5")
    a("v_lshl_add_u32 v16, v6, 1, v16")
    a("v_add_u32 v17, 1, v6")
    a("v_lshlrev_b32 v17, 13, v17")
    a("v_lshl_add_u32 v17, v5, 4, v17")
    for j in range(4):
        a(f"buffer_load_dwordx4 v[{SL+4*j}:{SL+4*j+3}], v16, s[40:43], s66 offen")
        a(f"buffer_load_dwordx4 v[{SL+16+4*j}:{SL+16+4*j+3}], v16, s[44:47], s66 offen")
        if j < 3:
            a(f"s_add_u32 s66, s66, {32*450}")
    a("s_getpc_b64 s[48:49]")
    a("s_add_u32 s48, s48, ctab@rel32@lo+4")
    a("s_addc_u32 s49, s49, ctab@rel32@hi+12")
    a("s_and_b32 s49, s49, 0xffff")
    a(f"s_mov_b32 s50, {52*1024}")
    a("s_lshr_b32 s66, s2, 3")
    a("s_lshl_b32 s66, s66, 10")
    for y in ["buffer_load_dwordx4 v[32:35], v2, s[48:51], s66 offen",
              "s_add_u32 s66, s66, 32768",
              "buffer_load_dwordx4 v[32:35], v2, s[48:51], s66 offen"]:
        a(y)
    srd(a, 40, 12, D * F * 2)
    srd(a, 44, 14, D * F * 2)
    a("s_lshr_b32 s66, s2, 3")
    a(f"s_mul_i32 s66, s66, {14*3584}")
    a("s_and_b32 s67, s2, 7")
    a("s_lshr_b32 s67, s67, 1")
    a("s_mul_i32 s67, s67, 896")
    a("s_add_u32 s66, s66, s67")
    NF1 = common.NF1
    def pfl(r0, r1):
        for r in range(r0, r1):
            for m in range(2):
                a(f"buffer_load_dwordx4 v[32:35], v18, s[{40+4*m}:{43+4*m}], s66 offen offset:{3584*(r&1)}")
            if r & 1:
                a("s_add_u32 s66, s66, 7168")
    pfl(0, NF1)
    stamp(a, 1)
    a("s_barrier")
    a("s_barrier")
    a(f"s_waitcnt vmcnt({2+2*NF1})")
    stamp(a, 2)
    for kk in range(8):
        q, sel = kk >> 1, (70 + (kk & 1))
        for ri in range(2):
            for jp in range(2):
                a(f"v_perm_b32 v{SO+4*kk+2*ri+jp}, v{SL+16*ri+4*(2*jp+1)+q}, v{SL+16*ri+4*(2*jp)+q}, s{sel}")
        a(f"buffer_store_dwordx4 v[{SO+4*kk}:{SO+4*kk+3}], v17, s[36:39], s72 offen sc1")
        a("s_add_u32 s72, s72, 8192")
    stamp(a, 3)
    pfl(NF1, 14)
    a("s_branch K0_fin")
    a.label("K0_ln3")
    a("s_waitcnt lgkmcnt(0)")
    stamp(a, 2)
    a("s_barrier")
    stamp(a, 3)
    AFL = [144, 148, 152, 156, 160, 164, 36]
    for t in range(7):
        a(f"ds_read_b128 v[{AFL[t]}:{AFL[t]+3}], v4 offset:{32*t}")
    a(f"ds_read_b64 v[{FV}:{FV+1}], v5")
    a(f"ds_read_b64 v[{FV+2}:{FV+3}], v5 offset:448")
    acc = f"v[{ACC0}:{ACC0+15}]"
    for t in range(7):
        a(f"s_waitcnt lgkmcnt({8-t})")
        a(f"v_mfma_f32_32x32x16_bf16 {acc}, v[{AFL[t]}:{AFL[t]+3}], v[{TB+4*t}:{TB+4*t+3}], {'0' if t == 0 else acc}")
    a("s_waitcnt lgkmcnt(0)")
    a(f"v_perm_b32 v{FV+4}, v{FV+2}, v{FV}, s70")
    a(f"v_perm_b32 v{FV+5}, v{FV+2}, v{FV}, s71")
    a(f"v_perm_b32 v{FV+6}, v{FV+3}, v{FV+1}, s70")
    a(f"v_perm_b32 v{FV+7}, v{FV+3}, v{FV+1}, s71")
    a("s_cmp_eq_u32 s52, 7")
    a("s_cbranch_scc1 K0_nx")
    a(f"buffer_store_dwordx4 v[{FV+4}:{FV+7}], v16, s[36:39], s69 offen sc1")
    a.label("K0_nx")
    a("s_nop 7")
    a("s_nop 7")
    for g in range(4):
        a(f"ds_write_b128 v17, v[{ACC0+4*g}:{ACC0+4*g+3}] offset:{g*1088}")
    a("s_waitcnt lgkmcnt(0)")
    a("s_barrier")
    for p_ in range(2):
        for kh in range(2):
            for gg in range(2):
                r = RD + (p_ * 2 + kh) * 8 + gg * 4
                a(f"ds_read_b128 v[{r}:{r+3}], v32 offset:{(2*p_+4*kh)*4352+gg*512}")
    a("s_waitcnt lgkmcnt(4)")
    for i in range(8):
        a(f"v_add_f32 v{RD+i}, v{RD+i}, v{RD+8+i}")
    for i in range(8):
        a(f"v_mul_f32 v{RD+i}, v33, v{RD+i}")
    a("s_waitcnt lgkmcnt(0)")
    for i in range(8):
        a(f"v_add_f32 v{RD+16+i}, v{RD+16+i}, v{RD+24+i}")
    for i in range(8):
        a(f"v_fma_f32 v{RD+i}, v34, v{RD+16+i}, v{RD+i}")
    for i in range(4):
        a(f"v_cvt_pk_bf16_f32 v{RD+8+i}, v{RD+2*i}, v{RD+2*i+1}")
    a("s_mov_b64 exec, s[78:79]")
    a(f"buffer_store_dwordx4 v[{RD+8}:{RD+11}], v19, s[36:39], s72 offen sc1")
    a("s_mov_b64 exec, -1")
    a.label("K0_fin")
    stamp(a, 4)
    stamp_flush(a, 5, 52)
    a.label("K0_end")
    a("s_endpgm")
```

```python
from common import *
import common

XF = 16
ACC = 128
BF = 192
K1_LDS = 122880
PRE = common.PRE1

C1 = -2.0 * 0.7978845608028654 * 1.4426950408889634
C2 = C1 * 0.044715

FR = 16
NG = 48
AC = 64
CK = 128
WV = 208
TW = 240
TMP = 248
ZL = 57344
TWL = 20480

def cfrag32(kind, t):
    return CK + 4 * (kind * 2 + t)
def cfrag64(kind, tau, beta, t):
    return CK + 16 + 4 * (kind * 8 + tau * 4 + beta * 2 + t)

def coff(f):
    return f * 1024 if f < 4 else 8192 + f * 1024
def twoff(stage, beta, p):
    sb = stage * 2 + beta
    return 4096 + p * 1024 if sb == 0 else 20480 + sb * 8192 + p * 1024

def gen_ctab(a):
    a.raw(".p2align 8")
    a.raw(".type ctab,@object")
    a.label("ctab")
    fn = [np.cos, np.sin]
    def emit(vals):
        for i in range(0, 512, 16):
            dw = [(vals[i + 2 * j] | (vals[i + 2 * j + 1] << 16)) for j in range(8)]
            a.raw(".long " + ",".join("0x%x" % d for d in dw))
    def twtab(stage, beta):
        for p in range(8):
            dws = []
            for l in range(64):
                h = l >> 5; c = l & 31
                cs = []; ss = []
                for e in range(2):
                    r = 2 * p + e
                    g, j = r >> 2, r & 3
                    if stage == 0:
                        m = c * (32 * beta + 8 * g + 4 * h + j)
                        sg = 1.0
                    else:
                        m = (c + 32 * beta) * (8 * g + 4 * h + j)
                        sg = -1.0
                    th = 2 * np.pi * (m % 2048) / 2048
                    cs.append(np.cos(th)); ss.append(sg * np.sin(th))
                dws += [f32hex(cs[0]), f32hex(cs[1]), f32hex(ss[0]), f32hex(ss[1])]
            for i in range(0, 256, 16):
                a.raw(".long " + ",".join(dws[i:i + 16]))
    for kind in range(2):
        for t in range(2):
            vals = []
            for l in range(64):
                h = l >> 5
                for i in range(8):
                    sl = 8 * (2 * t + (i >> 2)) + 4 * h + (i & 3)
                    vals.append(bf16(fn[kind](2 * np.pi * (((l & 31) * sl) % 32) / 32)))
            emit(vals)
    twtab(0, 0)
    for kind in range(2):
        for tau in range(2):
            for beta in range(2):
                for t in range(2):
                    vals = []
                    for l in range(64):
                        h = l >> 5
                        for i in range(8):
                            sl = 32 * beta + 8 * (2 * t + (i >> 2)) + 4 * h + (i & 3)
                            vals.append(bf16(fn[kind](2 * np.pi * ((((l & 31) + 32 * tau) * sl) % 64) / 64)))
                    emit(vals)
    twtab(0, 1); twtab(1, 0); twtab(1, 1)

def fr(ri, beta, t):
    r = FR + ((ri * 2 + beta) * 2 + t) * 4
    return f"v[{r}:{r+3}]"
def ng(beta, t):
    r = NG + (beta * 2 + t) * 4
    return f"v[{r}:{r+3}]"
def acc(ri, beta):
    r = AC + (ri * 2 + beta) * 16
    return f"v[{r}:{r+15}]"
def ca(idx):
    return f"v[{idx}:{idx+3}]"

def gen_fft(a):
    a("s_lshl_b32 s21, s2, 3")
    a("s_add_u32 s21, s21, s52")
    a("s_cmp_lt_u32 s21, 225")
    a("s_cselect_b32 s26, -1, 0")
    a("s_min_u32 s21, s21, 224")
    srd(a, 8, 22, WS_BYTES)
    srd(a, 12, 58, 52 * 1024)
    a("v_lshrrev_b32 v3, 5, v1")
    a("v_lshlrev_b32 v4, 4, v1")
    a("s_lshl_b32 s27, s21, 13")
    a(f"s_add_u32 s27, s27, {OFF_UF}")
    a("s_add_u32 s28, s27, 4096")
    def uload(beta):
        for ri in range(2):
            for t in range(2):
                a(f"buffer_load_dwordx4 {fr(ri,beta,t)}, v4, s[8:11], s{27+ri} offen offset:{beta*2048+t*1024}")
    uload(0)
    a("s_lshl_b32 s29, s52, 11")
    a("s_mov_b32 m0, s29")
    for i in range(2):
        a(f"buffer_load_dwordx4 v4, s[12:15], s29 offen offset:{i*1024} lds")
    if common.USLP:
        a(f"s_sleep {common.USLP}")
    uload(1)
    a("s_mov_b32 s31, 0x80008000")
    a("s_lshl_b32 s27, s21, 13")
    a(f"s_add_u32 s27, s27, {OFF_WT}")
    a("s_add_u32 s28, s27, 4096")
    a("s_mul_i32 s29, s52, 5120")
    a("s_add_u32 s29, s29, 16384")
    a("s_mov_b32 m0, s29")
    a("s_waitcnt vmcnt(4)")
    a("s_barrier")
    stamp(a, 1)
    for f in range(4):
        a(f"ds_read_b128 {ca(CK+4*f)}, v4 offset:{coff(f)}")
    for i in range(4):
        a(f"buffer_load_dwordx4 v4, s[12:15], s29 offen offset:{i*1024} lds")
    a("s_add_u32 s29, s29, 4096")
    a("s_mov_b32 m0, s29")
    a(f"buffer_load_dwordx4 v4, s[12:15], s29 offen lds")
    for i in range(8):
        a(f"v_xor_b32 v{NG+i}, s31, v{FR+i}")
    a("s_waitcnt lgkmcnt(0)")

    def fdst(ri, beta, r):
        return FR + ((ri * 2 + beta) * 2 + (r >> 3)) * 4 + ((r & 7) >> 1)
    def ndst(beta, r):
        return NG + (beta * 2 + (r >> 3)) * 4 + ((r & 7) >> 1)
    M = "v_mfma_f32_32x32x16_bf16"
    def st1(beta):
        o = []
        for t in range(2):
            z = t == 0
            o.append(f"{M} {acc(0,beta)}, {fr(0,beta,t)}, {ca(cfrag32(0,t))}, {'0' if z else acc(0,beta)}")
            o.append(f"{M} {acc(1,beta)}, {fr(1,beta,t)}, {ca(cfrag32(0,t))}, {'0' if z else acc(1,beta)}")
            o.append(f"{M} {acc(0,beta)}, {fr(1,beta,t)}, {ca(cfrag32(1,t))}, {acc(0,beta)}")
            o.append(f"{M} {acc(1,beta)}, {ng(beta,t)}, {ca(cfrag32(1,t))}, {acc(1,beta)}")
        return o
    def st2(dl, beta):
        o = []
        for t in range(2):
            z = beta == 0 and t == 0
            o.append(f"{M} {acc(0,dl)}, {ca(cfrag64(0,dl,beta,t))}, {fr(0,beta,t)}, {'0' if z else acc(0,dl)}")
            o.append(f"{M} {acc(1,dl)}, {ca(cfrag64(0,dl,beta,t))}, {fr(1,beta,t)}, {'0' if z else acc(1,dl)}")
            o.append(f"{M} {acc(0,dl)}, {ca(cfrag64(1,dl,beta,t))}, {fr(1,beta,t)}, {acc(0,dl)}")
            o.append(f"{M} {acc(1,dl)}, {ca(cfrag64(1,dl,beta,t))}, {ng(beta,t)}, {acc(1,dl)}")
        return o
    def st3(beta, dl):
        o = []
        for t in range(2):
            z = dl == 0 and t == 0
            o.append(f"{M} {acc(0,beta)}, {fr(0,dl,t)}, {ca(cfrag64(0,beta,dl,t))}, {'0' if z else acc(0,beta)}")
            o.append(f"{M} {acc(1,beta)}, {fr(1,dl,t)}, {ca(cfrag64(0,beta,dl,t))}, {'0' if z else acc(1,beta)}")
            o.append(f"{M} {acc(0,beta)}, {ng(dl,t)}, {ca(cfrag64(1,beta,dl,t))}, {acc(0,beta)}")
            o.append(f"{M} {acc(1,beta)}, {fr(0,dl,t)}, {ca(cfrag64(1,beta,dl,t))}, {acc(1,beta)}")
        return o
    def st4(beta):
        o = []
        for t in range(2):
            z = t == 0
            o.append(f"{M} {acc(0,beta)}, {fr(0,beta,t)}, {ca(cfrag32(0,t))}, {'0' if z else acc(0,beta)}")
            o.append(f"{M} {acc(1,beta)}, {fr(1,beta,t)}, {ca(cfrag32(0,t))}, {'0' if z else acc(1,beta)}")
            o.append(f"{M} {acc(0,beta)}, {ng(beta,t)}, {ca(cfrag32(1,t))}, {acc(0,beta)}")
            o.append(f"{M} {acc(1,beta)}, {fr(0,beta,t)}, {ca(cfrag32(1,t))}, {acc(1,beta)}")
        return o
    st = {"n": 0, "idx": {}}
    def emit(x):
        if isinstance(x, str):
            a(x)
            if x.startswith("ds_"):
                st["n"] += 1
        elif x[0] == "rd":
            a(x[2]); st["idx"][x[1]] = st["n"]; st["n"] += 1
        elif x[0] == "wt":
            a(f"s_waitcnt lgkmcnt({min(15, st['n'] - st['idx'][x[1]] - 1)})")
    def rd_tw(stage, beta, p):
        return ("rd", ("tw", stage, beta, p), f"ds_read_b128 v[{WV+4*p}:{WV+4*p+3}], v4 offset:{twoff(stage,beta,p)}")
    def rd_w(i):
        return ("rd", ("w", i), f"ds_read_b128 v[{WV+4*i}:{WV+4*i+3}], v6 offset:{i*1024}")
    def tw(stage, beta, nxt):
        negri = 0 if stage == 0 else 1
        gs = []
        for p in range(8):
            g = [("wt", ("tw", stage, beta, p))]
            r = 2 * p
            R = AC + beta * 16 + r
            I = AC + (2 + beta) * 16 + r
            c = WV + 4 * p; s = c + 2
            u = TMP + 4 * (p & 1); t = u + 2
            for e in range(2):
                g.append(f"v_mul_f32 v{u+e}, v{I+e}, v{c+e}")
                g.append(f"v_mul_f32 v{t+e}, v{R+e}, v{c+e}")
            for e in range(2):
                g.append(f"v_fma_f32 v{u+e}, -v{R+e}, v{s+e}, v{u+e}")
                g.append(f"v_fmac_f32 v{t+e}, v{I+e}, v{s+e}")
            if nxt is not None:
                g.append(nxt(p))
            g.append(f"v_cvt_pk_bf16_f32 v{fdst(1,beta,r)}, v{u}, v{u+1}")
            g.append(f"v_cvt_pk_bf16_f32 v{fdst(0,beta,r)}, v{t}, v{t+1}")
            x = t if negri == 0 else u
            g.append(f"v_cvt_pk_bf16_f32 v{ndst(beta,r)}, -v{x}, -v{x+1}")
            gs.append(g)
        return gs
    def wm(dl):
        gs = []
        for r in range(0, 16, 2):
            g, jp = r >> 2, (r & 3) >> 1
            R = AC + dl * 16 + r
            I = AC + (2 + dl) * 16 + r
            wr = WV + dl * 16 + 4 * g + jp
            wi = wr + 2
            c = TW + 4 * ((r >> 1) & 1); s = c + 2
            u = TMP + 4 * ((r >> 1) & 1); t = u + 2
            gg = [("wt", ("w", dl * 4 + g)),
                f"v_lshlrev_b32 v{c}, 16, v{wr}",
                f"v_and_b32 v{c+1}, 0xffff0000, v{wr}",
                f"v_lshlrev_b32 v{s}, 16, v{wi}",
                f"v_and_b32 v{s+1}, 0xffff0000, v{wi}"]
            if jp == 1:
                gg.append(rd_tw(1, 0, dl * 4 + g))
            gg += [
                f"v_mul_f32 v{u}, v{I}, v{c}", f"v_mul_f32 v{t}, v{R}, v{c}",
                f"v_mul_f32 v{u+1}, v{I+1}, v{c+1}", f"v_mul_f32 v{t+1}, v{R+1}, v{c+1}",
                f"v_fmac_f32 v{u}, v{R}, v{s}", f"v_fma_f32 v{t}, -v{I}, v{s}, v{t}",
                f"v_fmac_f32 v{u+1}, v{R+1}, v{s+1}", f"v_fma_f32 v{t+1}, -v{I+1}, v{s+1}, v{t+1}",
                f"v_cvt_pk_bf16_f32 v{fdst(1,dl,r)}, v{u}, v{u+1}",
                f"v_cvt_pk_bf16_f32 v{fdst(0,dl,r)}, v{t}, v{t+1}",
                f"v_cvt_pk_bf16_f32 v{ndst(dl,r)}, -v{u}, -v{u+1}"]
            gs.append(gg)
        return gs
    def fin(beta):
        gs = []
        for r0 in range(0, 16, 2):
            g_ = []
            for r in (r0, r0 + 1):
                g, j = r >> 2, r & 3
                R = AC + beta * 16 + r
                I = AC + (2 + beta) * 16 + r
                g_ += [f"v_cvt_pk_bf16_f32 v{R}, v{R}, v{I}",
                       f"ds_write_b32 v2, v{R} offset:{(32*beta+8*g+j)*128}"]
            gs.append(g_)
        return gs
    def mix(ms, gs=None):
        if gs is None:
            for m in ms: a(m)
            return
        gi = 0
        for i, m in enumerate(ms):
            a(m)
            if i >= 1:
                n = 1 if i < len(ms) - 1 else len(gs) - gi
                if i == 1: n = 2
                for _ in range(n):
                    if gi < len(gs):
                        for x in gs[gi]: emit(x)
                        gi += 1
        a("s_nop 1")

    a("s_lshl_b32 s29, s52, 13")
    a(f"s_add_u32 s29, s29, {ZL}")
    a("v_add_u32 v6, s29, v4")
    def wdma(i):
        o = []
        if i % 4 == 0:
            o += ["s_mov_b32 m0, s29", "s_add_u32 s29, s29, 4096"]
        o.append(f"buffer_load_dwordx4 v4, s[8:11], s{27+(i>>2)} offen offset:{(i&3)*1024} lds")
        return o
    for i, m in enumerate(st1(0)):
        a(m)
        emit(rd_tw(0, 0, i))
    a("s_waitcnt vmcnt(5)")
    for i in range(8, 16):
        a(f"v_xor_b32 v{NG+i}, s31, v{FR+i}")
    a("s_nop 1")
    stamp(a, 2)
    if common.FFT1:
        a("s_cmp_ge_u32 s52, 4")
        a("s_cbranch_scc1 F_skipA")
    WP = common.WPOS
    g0 = tw(0, 0, None)
    if WP == 0:
        g0 = [g + wdma(i) for i, g in enumerate(g0)]
    mix(st1(1), g0)
    a.label("F_skipA")
    a(f"s_waitcnt vmcnt({8 if WP == 0 else 0})")
    a("s_barrier")
    stamp(a, 3)
    first4 = [4, 5, 12, 13]
    for f in first4:
        emit(("rd", ("c", f), f"ds_read_b128 {ca(CK+4*f)}, v4 offset:{coff(f)}"))
    for p in range(8):
        emit(rd_tw(0, 1, p))
    rest = [f for f in range(4, 20) if f not in first4]
    for f in rest:
        emit(("rd", ("c", f), f"ds_read_b128 {ca(CK+4*f)}, v4 offset:{coff(f)}"))
    emit(("wt", ("c", 13)))
    if common.FFT1:
        a("s_cmp_ge_u32 s52, 4")
        a("s_cbranch_scc1 F_skipB")
    g1 = tw(0, 1, None)
    if WP == 1:
        g1 = [g + wdma(i) for i, g in enumerate(g1)]
    mix(st2(0, 0), g1)
    emit(("wt", ("c", rest[-1])))
    mix(st2(0, 1))
    s4 = st2(1, 0)
    mix(s4[:4])
    a("s_waitcnt vmcnt(0)")
    for p in range(8):
        emit(rd_w(p))
    mix(s4[4:])
    stamp(a, 4)
    mix(st2(1, 1), wm(0))
    mix(st3(0, 0), wm(1))
    mix(st3(0, 1) + st3(1, 0))
    stamp(a, 5)
    mix(st3(1, 1), tw(1, 0, lambda p: rd_tw(1, 1, p)))
    mix(st4(0), tw(1, 1, None))
    a("v_and_b32 v2, 31, v1")
    a("v_lshlrev_b32 v2, 2, v2")
    a("v_lshl_add_u32 v2, v3, 9, v2")
    a("s_lshl_b32 s28, s52, 13")
    a(f"s_add_u32 s28, s28, {ZL}")
    a("v_add_u32 v2, s28, v2")
    mix(st4(1), fin(0))
    stamp(a, 6)
    a("v_and_b32 v5, 31, v1")
    a("v_lshlrev_b32 v5, 2, v5")
    a("v_lshl_add_u32 v5, v3, 15, v5")
    a("s_lshl_b32 s28, s52, 7")
    a(f"s_add_u32 s28, s28, {ZL}")
    a("v_add_u32 v5, s28, v5")
    a(f"s_mul_i32 s28, s52, {NSTEP}")
    a("s_add_u32 s28, s28, s2")
    a("s_add_u32 s28, s28, 112")
    a("s_lshl_b32 s28, s28, 10")
    a(f"s_add_u32 s28, s28, {OFF_HZ}")
    a("s_waitcnt lgkmcnt(0)")
    a("s_barrier")
    for i in range(4):
        for q in range(4):
            a(f"ds_read_b32 v{WV+4*i+q}, v5 offset:{q*8192+i*1024}")
    f1 = fin(1)
    for i in range(4):
        for g in f1[2*i:2*i+2]:
            for x in g: a(x)
        a(f"s_waitcnt lgkmcnt({min(12-4*i+4*(i+1), 15)})")
        a(f"buffer_store_dwordx4 v[{WV+4*i}:{WV+4*i+3}], v4, s[8:11], s28 offen sc1")
        a(f"s_add_u32 s28, s28, {8*NSTEP*1024}")
    a.label("F_skipB")
    a("s_waitcnt lgkmcnt(0)")
    a("s_barrier")
    for i in range(4, 8):
        for q in range(4):
            a(f"ds_read_b32 v{FR+4*i+q}, v5 offset:{q*8192+i*1024}")
    for i in range(4, 8):
        a(f"s_waitcnt lgkmcnt({28-4*i})")
        a(f"buffer_store_dwordx4 v[{FR+4*i}:{FR+4*i+3}], v4, s[8:11], s28 offen sc1")
        a(f"s_add_u32 s28, s28, {8*NSTEP*1024}")

def gen_k1(a):
    common.CUR = "k1"
    khead(a, "k1_kernel")
    a("s_cmp_ge_u32 s2, 256")
    a("s_cbranch_scc1 K1_end")
    a("s_load_dwordx4 s[12:15], s[0:1], 32")
    a("s_load_dwordx2 s[22:23], s[0:1], 72")
    a("s_load_dwordx2 s[40:41], s[0:1], 48")
    a("s_getpc_b64 s[58:59]")
    a(f"s_add_u32 s58, s58, ctab@rel32@lo+4")
    a(f"s_addc_u32 s59, s59, ctab@rel32@hi+12")
    a("v_lshrrev_b32 v1, 6, v0")
    a("s_nop 0")
    a("v_readfirstlane_b32 s52, v1")
    a("v_and_b32 v1, 63, v0")
    a("s_cmp_ge_u32 s2, 32")
    a("s_cbranch_scc1 K1_gemm")
    a("s_cmp_ge_u32 s2, 29")
    a(f"s_cbranch_scc1 {'K1_pf' if common.IDLEPF else 'K1_end'}")
    a("s_waitcnt lgkmcnt(0)")
    stamp(a, 0)
    gen_fft(a)
    stamp(a, 7)
    a("s_branch K1_fin2")
    a.label("K1_gemm")
    a("s_sub_u32 s57, s2, 32")
    a("s_lshr_b32 s54, s57, 3")
    a("s_mov_b32 s70, s54")
    a("s_and_b32 s57, s57, 7")
    if common.MAPX:
        a("s_mov_b32 s53, s54")
        a("s_mov_b32 s54, s57")
    else:
        a("s_lshr_b32 s53, s57, 1")
        a("s_mul_i32 s53, s53, 7")
        a("s_lshr_b32 s61, s54, 2")
        a("s_add_u32 s53, s53, s61")
        a("s_and_b32 s54, s54, 3")
        a("s_and_b32 s57, s57, 1")
        a("s_lshl_b32 s57, s57, 2")
        a("s_add_u32 s54, s54, s57")
    a("s_lshl_b32 s55, s54, 3")
    a("s_add_u32 s55, s55, s52")
    a("s_waitcnt lgkmcnt(0)")
    stamp(a, 0)
    srd(a, 36, 22, WS_BYTES)
    a("s_and_b32 s62, s52, 1")
    a("s_cmp_eq_u32 s62, 0")
    a("s_cselect_b32 s28, s12, s14")
    a("s_cselect_b32 s29, s13, s15")
    a("s_and_b32 s29, s29, 0xffff")
    a(f"s_mov_b32 s30, {D*F*2}")
    a("s_mov_b32 s31, 0x00020000")
    a("s_lshl_b32 s57, s53, 7")
    a("v_lshlrev_b32 v2, 4, v1")
    a(f"s_mul_i32 s68, s55, {28*1024}")
    a(f"s_add_u32 s68, s68, {OFF_XNF}")
    a("v_lshrrev_b32 v3, 3, v1")
    a("v_and_b32 v4, 7, v1")
    a("v_bfe_u32 v5, v3, 1, 1")
    a("v_lshlrev_b32 v5, 2, v5")
    a("v_xor_b32 v4, v4, v5")
    a("s_lshr_b32 s63, s52, 1")
    a("s_lshl_b32 s64, s63, 3")
    a("v_add_u32 v3, s64, v3")
    a("s_movk_i32 s56, 3584")
    a("v_mul_lo_u32 v3, v3, s56")
    a("v_lshl_add_u32 v3, v4, 4, v3")
    a("v_add_u32 v3, s57, v3")
    a("s_mul_i32 s65, s62, 57344")
    a("s_lshl_b32 s64, s63, 10")
    a("s_add_u32 s65, s65, s64")
    a("s_lshr_b32 s72, s70, 2")
    a("s_and_b32 s73, s70, 3")
    a("s_lshl_b32 s73, s73, 1")
    a("s_add_u32 s72, s72, s73")
    a("s_cmp_ge_u32 s72, 7")
    a("s_cselect_b32 s73, 7, 0")
    a("s_sub_u32 s72, s72, s73")
    a("s_mov_b32 s72, 0")
    a(f"s_mul_i32 s67, s72, {2*3584*32}")
    a("s_lshl_b32 s72, s72, 12")
    a("s_add_u32 s68, s68, s72")
    vm = {"n": 0, "last": {}}
    def chunk_ops(c):
        ops = []
        for i in range(2):
            ops.append(["s_mov_b32 m0, s65", "s_add_u32 s65, s65, 4096",
                        "buffer_load_dwordx4 v3, s[28:31], s67 offen lds", f"s_add_u32 s67, s67, {3584*32}"])
        for t in range(4 * c, 4 * c + 4):
            o = [f"buffer_load_dwordx4 v[{XF+4*t}:{XF+4*t+3}], v2, s[36:39], s68 offen offset:{(t&3)*1024}"]
            if t & 3 == 3:
                o.append("s_add_u32 s68, s68, 4096")
            ops.append(o)
        return [(c, o) for o in ops]
    def vissue(co):
        c, o = co
        for x in o: a(x)
        vm["n"] += 1
        vm["last"][c] = vm["n"]
    def vwait(c):
        a(f"s_waitcnt vmcnt({vm['n'] - vm['last'][c]})")
    def chunk(c):
        for co in chunk_ops(c): vissue(co)
    chunk(0)
    a("v_lshrrev_b32 v4, 5, v1")
    a("v_bfe_u32 v5, v1, 2, 2")
    a("v_lshl_add_u32 v4, v4, 3, v5")
    a("v_lshlrev_b32 v4, 7, v4")
    a("v_bfe_u32 v6, v1, 4, 1")
    a("v_bfe_u32 v7, v1, 1, 1")
    a("v_lshl_add_u32 v6, v6, 1, v7")
    a("v_lshrrev_b32 v7, 1, v5")
    a("v_lshlrev_b32 v7, 2, v7")
    a("v_xor_b32 v6, v6, v7")
    a("v_lshl_add_u32 v4, v6, 4, v4")
    a("v_and_b32 v7, 1, v1")
    a("v_lshl_add_u32 v4, v7, 3, v4")
    a("v_xor_b32 v5, 64, v4")
    a("v_add_u32 v6, 57344, v4")
    a("v_add_u32 v7, 57344, v5")

    def trreads(t):
        bs = BF + 16 * (t & 1)
        for j in range(4):
            for q in range(2):
                a(f"ds_read_b64_tr_b16 v[{bs+4*j+2*q}:{bs+4*j+2*q+1}], v{4+j} offset:{t*2048+q*512}")

    a("s_waitcnt vmcnt(3)")
    for c in range(1, PRE):
        chunk(c)
    stamp(a, 1)
    vwait(0)
    a("s_barrier")
    stamp(a, 2)
    trreads(0)
    pend = []
    if common.PF3:
        a("s_and_b32 s41, s41, 0xffff")
        a(f"s_mov_b32 s42, {F*D*2}")
        a("s_mov_b32 s43, 0x00020000")
        a("s_getpc_b64 s[44:45]")
        a("s_add_u32 s44, s44, gdftab@rel32@lo+4")
        a("s_addc_u32 s45, s45, gdftab@rel32@hi+12")
        a("s_and_b32 s45, s45, 0xffff")
        a(f"s_mov_b32 s46, {14*29*1024}")
        a("s_mov_b32 s47, 0x00020000")
        a("s_getpc_b64 s[48:49]")
        a("s_add_u32 s48, s48, k3_kernel@rel32@lo+4")
        a("s_addc_u32 s49, s49, k3_kernel@rel32@hi+12")
        a("s_and_b32 s49, s49, 0xffff")
        a("s_mov_b32 s50, K3_end-k3_kernel")
        a("s_mov_b32 s51, 0x00020000")
        a("s_lshl_b32 s74, s70, 3")
        a("s_add_u32 s74, s74, s52")
        NS = common.NS3
        a("s_mul_i32 s75, s74, 1171")
        a("s_lshr_b32 s75, s75, 16")
        a("s_mul_i32 s76, s75, 56")
        a("s_sub_u32 s76, s74, s76")
        a(f"s_mul_i32 s75, s75, {common.K3N0*14336}")
        a(f"s_mul_i32 s76, s76, {NS*256}")
        a("s_add_u32 s75, s75, s76")
        a("s_mul_i32 s76, s74, 4682")
        a("s_lshr_b32 s76, s76, 16")
        a("s_mul_i32 s78, s76, 14")
        a("s_sub_u32 s78, s74, s78")
        a("s_mul_i32 s78, s78, 29")
        a("s_add_u32 s76, s76, s78")
        a("s_lshl_b32 s76, s76, 10")
        a("s_lshl_b32 s74, s74, 10")
    def pf_ops():
        ops = [["buffer_load_dwordx4 v[16:19], v2, s[48:51], s74 offen"]]
        for i in range(common.NS3 // 4):
            o = [f"buffer_load_dwordx4 v[16:19], v2, s[40:43], s75 offen offset:{(i&3)*1024}"]
            if i & 3 == 3:
                o.append("s_add_u32 s75, s75, 4096")
            ops.append(o)
        if common.NS3:
            ops.append([f"buffer_load_dwordx4 v[16:19], v2, s[44:47], s76 offen"])
        return [(99, o) for o in ops]
    pfe = []
    if common.PF3 and common.PF3T < 20:
        a("s_sub_u32 s77, s2, 32")
        a("s_lshl_b32 s77, s77, 3")
        a("s_add_u32 s77, s77, s52")
        a("s_lshl_b32 s77, s77, 10")
        pfe = [(99, ["buffer_load_dwordx4 v[8:11], v2, s[40:43], s77 offen"]),
               (99, ["buffer_load_dwordx4 v[8:11], v2, s[44:47], s77 offen"])]
        if common.IDLEPF:
            pfe = [(99, ["buffer_load_dwordx4 v[16:19], v2, s[40:43], s77 offen"])]
    for t in range(28):
        if t % 4 == 0 and t // 4 + PRE < 7:
            pend = chunk_ops(t // 4 + PRE)
        if t == 20 and common.PF3:
            pend = pf_ops()
        if t + 1 < 28:
            if (t + 1) % 4 == 0:
                vwait((t + 1) // 4)
                a("s_barrier")
            trreads(t + 1)
            a("s_waitcnt lgkmcnt(8)")
        else:
            a("s_waitcnt lgkmcnt(0)")
        bs = BF + 16 * (t & 1)
        xf = XF + 4 * t
        for j in range(4):
            ac = f"v[{ACC+16*j}:{ACC+16*j+15}]"
            cin = "0" if t == 0 else ac
            a(f"v_mfma_f32_32x32x16_bf16 {ac}, v[{bs+4*j}:{bs+4*j+3}], v[{xf}:{xf+3}], {cin}")
            if pend and (j == 1 or (j == 3 and (t % 4 < 2 or t >= 20))):
                vissue(pend.pop(0))
            if pfe and j == 2 and t >= (20 if common.IDLEPF else common.PF3T):
                vissue(pfe.pop(0))
    stamp(a, 3)
    a(f"s_mov_b32 s61, {f32hex(C1)}")
    a(f"s_mov_b32 s62, {f32hex(C2)}")
    a(f"s_mul_i32 s63, s55, {NSTEP}")
    a("s_lshl_b32 s64, s53, 2")
    a("s_add_u32 s63, s63, s64")
    a("s_lshl_b32 s63, s63, 10")
    a(f"s_add_u32 s63, s63, {OFF_HZ}")
    a("v_mov_b32 v15, s61")
    a("s_nop 7")
    for jj in range(2):
        for r in range(0, 16, 4):
            tm = [8, 9, 10, 11]
            gs = [ACC + 16 * jj + r + e for e in range(4)]
            us = [ACC + 16 * (2 + jj) + r + e for e in range(4)]
            for e in range(4):
                a(f"v_mul_f32 v{tm[e]}, v{gs[e]}, v{gs[e]}")
            for e in range(4):
                a(f"v_fma_f32 v{tm[e]}, v{tm[e]}, s62, v15")
            for e in range(4):
                a(f"v_mul_f32 v{tm[e]}, v{tm[e]}, v{gs[e]}")
            for e in range(4):
                a(f"v_exp_f32 v{tm[e]}, v{tm[e]}")
            for e in range(4):
                a(f"v_mul_f32 v{gs[e]}, v{gs[e]}, v{us[e]}")
            for e in range(4):
                a(f"v_add_f32 v{tm[e]}, 1.0, v{tm[e]}")
            for e in range(4):
                a(f"v_rcp_f32 v{tm[e]}, v{tm[e]}")
            a("s_nop 0")
            for e in range(4):
                a(f"v_mul_f32 v{tm[e]}, v{tm[e]}, v{gs[e]}")
            a(f"v_cvt_pk_bf16_f32 v{BF + jj*8 + r//2}, v8, v9")
            a(f"v_cvt_pk_bf16_f32 v{BF + jj*8 + r//2 + 1}, v10, v11")
        for t in range(2):
            a(f"buffer_store_dwordx4 v[{BF+jj*8+4*t}:{BF+jj*8+4*t+3}], v2, s[36:39], s63 offen offset:{(2*jj+t)*1024} sc1")
    a.label("K1_fin")
    stamp(a, 4)
    a.label("K1_fin2")
    stamp_flush(a, 8, 52)
    a.label("K1_end")
    a("s_endpgm")
    if common.IDLEPF:
        a.label("K1_pf")
        a("s_waitcnt lgkmcnt(0)")
        a("s_and_b32 s41, s41, 0xffff")
        a(f"s_mov_b32 s42, {F*D*2}")
        a("s_mov_b32 s43, 0x00020000")
        a("s_getpc_b64 s[44:45]")
        a("s_add_u32 s44, s44, gdftab@rel32@lo+4")
        a("s_addc_u32 s45, s45, gdftab@rel32@hi+12")
        a("s_and_b32 s45, s45, 0xffff")
        a(f"s_mov_b32 s46, {14*29*1024}")
        a("s_mov_b32 s47, 0x00020000")
        a("v_lshlrev_b32 v2, 4, v1")
        a("s_sub_u32 s74, s2, 29")
        a("s_lshl_b32 s74, s74, 3")
        a("s_add_u32 s74, s74, s52")
        a("s_mul_i32 s75, s74, 10240")
        for q in range(4):
            a(f"s_add_u32 s76, s75, {q*common.K3N0*14336}")
            for i in range(10):
                a(f"buffer_load_dwordx4 v[16:19], v2, s[40:43], s76 offen offset:{(i&3)*1024}")
                if i & 3 == 3:
                    a("s_add_u32 s76, s76, 4096")
        a(f"s_mul_i32 s76, s74, {17*1024}")
        for i in range(17):
            a(f"buffer_load_dwordx4 v[16:19], v2, s[44:47], s76 offen offset:{(i&3)*1024}")
            if i & 3 == 3:
                a("s_add_u32 s76, s76, 4096")
        a("s_endpgm")
```

```python
from common import *
import common

NB = 10
ACC = 16
RING = 80
AFR = 240
XR = 248
TRB = 240
RED = 81920
K3_LDS = RED + 16 * 4352
N0 = common.K3N0

def gen_k3(a, tabsym):
    common.CUR = "k3"
    khead(a, "k3_kernel")
    a("s_cmp_ge_u32 s2, 224")
    a("s_cbranch_scc1 K3_end")
    a("s_load_dwordx2 s[4:5], s[0:1], 0")
    a("s_load_dwordx2 s[6:7], s[0:1], 56")
    a("s_load_dwordx2 s[8:9], s[0:1], 72")
    a("s_load_dwordx2 s[44:45], s[0:1], 48")
    a("s_getpc_b64 s[10:11]")
    a(f"s_add_u32 s10, s10, {tabsym}@rel32@lo+4")
    a(f"s_addc_u32 s11, s11, {tabsym}@rel32@hi+12")
    a("v_lshrrev_b32 v1, 6, v0")
    a("s_nop 0")
    a("v_readfirstlane_b32 s30, v1")
    a("v_and_b32 v1, 63, v0")
    a("s_and_b32 s31, s2, 7")
    a("s_lshr_b32 s32, s2, 3")
    a("s_mul_i32 s33, s32, 37")
    a("s_lshr_b32 s33, s33, 8")
    a("s_mul_i32 s34, s33, 7")
    a("s_sub_u32 s34, s32, s34")
    a("s_lshl_b32 s31, s31, 2")
    a("s_add_u32 s33, s33, s31")
    a(f"s_mul_i32 s40, s30, {N0}")
    a(f"s_mul_i32 s41, s40, {16*896}")
    a("s_lshl_b32 s40, s40, 10")
    a(f"s_mul_i32 s42, s30, {NB*2048}")
    a("s_waitcnt lgkmcnt(0)")
    stamp(a, 0)
    srd(a, 12, 4, S * D * 2)
    srd(a, 16, 6, S * D * 2)
    srd(a, 20, 8, WS_BYTES)
    srd(a, 24, 10, 14 * 29 * 1024)
    srd(a, 48, 44, F * D * 2)
    a("v_lshlrev_b32 v2, 4, v1")
    a(f"s_mul_i32 s35, s33, {2*NSTEP*1024}")
    a(f"s_add_u32 s35, s35, {OFF_HZ}")
    a("v_add_u32 v5, s35, v2")
    a(f"v_add_u32 v6, {NSTEP*1024}, v5")
    a("v_lshrrev_b32 v9, 5, v1")
    a(f"s_mul_i32 s35, s34, {2*29*1024}")
    a("v_add_u32 v7, s35, v2")
    a(f"v_add_u32 v8, {29*1024}, v7")
    a("v_lshrrev_b32 v3, 3, v1")
    a("v_and_b32 v4, 7, v1")
    a("v_bfe_u32 v11, v3, 1, 1")
    a("v_lshlrev_b32 v11, 2, v11")
    a("v_xor_b32 v4, v4, v11")
    a("s_movk_i32 s35, 896")
    a("v_mul_lo_u32 v3, v3, s35")
    a("v_lshl_add_u32 v3, v4, 4, v3")
    a("s_lshl_b32 s35, s34, 7")
    a("v_add_u32 v3, s35, v3")
    a("v_bfe_u32 v11, v1, 2, 2")
    a("v_lshl_add_u32 v4, v9, 2, v11")
    a("v_lshlrev_b32 v4, 7, v4")
    a("v_bfe_u32 v12, v1, 4, 1")
    a("v_bfe_u32 v13, v1, 1, 1")
    a("v_lshl_add_u32 v12, v12, 1, v13")
    a("v_lshrrev_b32 v13, 1, v11")
    a("v_lshlrev_b32 v13, 2, v13")
    a("v_xor_b32 v12, v12, v13")
    a("v_lshl_add_u32 v4, v12, 4, v4")
    a("v_and_b32 v13, 1, v1")
    a("v_lshl_add_u32 v4, v13, 3, v4")
    a("v_add_u32 v4, s42, v4")
    a("v_xor_b32 v14, 64, v4")
    a("v_lshrrev_b32 v10, 2, v1")
    a("v_lshlrev_b32 v15, 4, v10")
    a("v_lshlrev_b32 v10, 6, v10")
    a("s_lshl_b32 s35, s33, 1")
    a("s_and_b32 s36, s30, 1")
    a("s_add_u32 s35, s35, s36")
    a("v_add_u32 v10, s35, v10")
    a("s_movk_i32 s35, 896")
    a("v_mul_lo_u32 v10, v10, s35")
    a("s_lshl_b32 s35, s34, 7")
    a("s_lshr_b32 s36, s30, 1")
    a("s_lshl_b32 s36, s36, 6")
    a("s_add_u32 s35, s35, s36")
    a("v_add_u32 v10, s35, v10")
    a("v_and_b32 v11, 3, v1")
    a("v_lshl_add_u32 v10, v11, 4, v10")
    a("v_mul_u32_u24 v11, 1088, v11")
    a("v_add_u32 v15, v15, v11")
    a(f"s_mul_i32 s35, s30, {4*4352}")
    a(f"s_add_u32 s35, s35, {RED}")
    a("v_add_u32 v15, s35, v15")
    a(f"s_mov_b32 s37, {64*16*896}")
    a("s_cmp_eq_u32 s30, 3")
    a("s_cbranch_scc1 K3_m3")

    def mainloop(kinds):
        n = len(kinds)
        def issue(i):
            r = RING + 16 * (i % NB)
            if kinds[i] == 'G':
                a(f"s_add_u32 s43, s42, {(i % NB)*2048}")
                a("s_mov_b32 m0, s43")
                a("buffer_load_dwordx4 v3, s[48:51], s41 offen lds")
                a(f"s_add_u32 s41, s41, {8*896 - 1024}")
                a("buffer_load_dwordx4 v3, s[48:51], s41 offen offset:1024 lds")
                a(f"s_add_u32 s41, s41, {8*896 + 1024}")
            else:
                T = i - kinds.index('Z')
                a(f"s_mov_b32 s43, {T*1024}")
                a(f"buffer_load_dwordx4 v[{r}:{r+3}], v7, s[24:27], s43 offen")
                a(f"buffer_load_dwordx4 v[{r+4}:{r+7}], v8, s[24:27], s43 offen")
            a(f"buffer_load_dwordx4 v[{r+8}:{r+11}], v5, s[20:23], s40 offen")
            a(f"buffer_load_dwordx4 v[{r+12}:{r+15}], v6, s[20:23], s40 offen")
            a("s_add_u32 s40, s40, 1024")
        def trr(i):
            if kinds[i] != 'G':
                return 0
            r = RING + 16 * (i % NB)
            for ds, av in ((0, 4), (1, 14)):
                for q in range(2):
                    a(f"ds_read_b64_tr_b16 v[{r+4*ds+2*q}:{r+4*ds+2*q+1}], v{av} offset:{(i % NB)*2048+q*1024}")
            return 4
        for i in range(NB):
            issue(i)
        stamp(a, 1)
        XI = n - NB
        a(f"s_waitcnt vmcnt({4*(NB-1)})")
        stamp(a, 2)
        trr(0)
        for i in range(n):
            nl = 0
            if i + 1 < n:
                ahead = min(i + NB, n) - (i + 1) - 1
                xl = 2 if i > XI else 0
                a(f"s_waitcnt vmcnt({4*ahead + xl})")
                nl = trr(i + 1)
            a(f"s_waitcnt lgkmcnt({nl})")
            r = RING + 16 * (i % NB)
            for ds in range(2):
                for bs in range(2):
                    tau = ds * 2 + bs
                    ac = f"v[{ACC+16*tau}:{ACC+16*tau+15}]"
                    a(f"v_mfma_f32_32x32x16_bf16 {ac}, v[{r+4*ds}:{r+4*ds+3}], v[{r+8+4*bs}:{r+8+4*bs+3}], {'0' if i == 0 else ac}")
            if i + NB < n:
                issue(i + NB)
            if i == XI:
                a(f"buffer_load_dwordx4 v[{XR}:{XR+3}], v10, s[12:15], 0 offen")
                a(f"buffer_load_dwordx4 v[{XR+4}:{XR+7}], v10, s[12:15], s37 offen")
    mainloop(['G'] * N0)
    a("s_branch K3_red")
    a.label("K3_m3")
    mainloop(['G'] * (112 - 3 * N0) + ['Z'] * 29)
    a.label("K3_red")
    stamp(a, 3)
    a("s_mul_i32 s35, s30, 4352")
    a(f"s_add_u32 s35, s35, {RED}")
    a("v_add_u32 v2, s35, v2")
    a("s_nop 15")
    for tau in range(4):
        for g in range(4):
            a(f"ds_write_b128 v2, v[{ACC+16*tau+4*g}:{ACC+16*tau+4*g+3}] offset:{tau*4*4352+g*1088}")
    a("s_waitcnt lgkmcnt(0)")
    a("s_barrier")
    for hf in range(2):
        for src in range(4):
            for hh in range(2):
                r = RING + 32 * hf + 8 * src + 4 * hh
                a(f"ds_read_b128 v[{r}:{r+3}], v15 offset:{src*4352+hh*512+hf*256}")
    a("s_waitcnt vmcnt(0)")
    for hf in range(2):
        b = RING + 32 * hf
        a(f"s_waitcnt lgkmcnt({12-8*hf})")
        for r in range(8):
            a(f"v_add_f32 v{b+r}, v{b+r}, v{b+8+r}")
        a(f"s_waitcnt lgkmcnt({8-8*hf})")
        for r in range(8):
            a(f"v_add_f32 v{b+16+r}, v{b+16+r}, v{b+24+r}")
        for p in range(4):
            x = XR + 4 * hf + p
            a(f"v_lshlrev_b32 v11, 16, v{x}")
            a(f"v_and_b32 v12, 0xffff0000, v{x}")
            a(f"v_add_f32 v{b+2*p}, v{b+2*p}, v{b+16+2*p}")
            a(f"v_add_f32 v{b+2*p+1}, v{b+2*p+1}, v{b+16+2*p+1}")
            a(f"v_add_f32 v11, v11, v{b+2*p}")
            a(f"v_add_f32 v12, v12, v{b+2*p+1}")
            a(f"v_cvt_pk_bf16_f32 v{x}, v11, v12")
        a(f"buffer_store_dwordx4 v[{XR+4*hf}:{XR+4*hf+3}], v10, s[16:19], {'s37' if hf else '0'} offen{' sc1' if common.K3SC else ''}")
    a.label("K3_fin")
    if common.STAMP == "k3":
        a("s_waitcnt vmcnt(0)")
    stamp(a, 4)
    stamp_flush(a, 5, 30)
    a.label("K3_end")
    a("s_endpgm")
```

```python
import numpy as np

S, D, F, NK = 2048, 448, 1792, 225
NT3 = 29
NSTEP = 112 + NT3
OFF_HZ = 0
SZ_HZ = 64 * NSTEP * 1024
OFF_WDF = OFF_HZ + SZ_HZ
SZ_WDF = 14 * NSTEP * 1024
OFF_WT = OFF_WDF + SZ_WDF
SZ_WT = 226 * 8192
OFF_UF = OFF_WT + SZ_WT
SZ_UF = 512 * 64 * 64
WS_BYTES = 268435456

def bf16(x):
    u = int(np.float32(x).view(np.uint32))
    return ((u + 0x7FFF + ((u >> 16) & 1)) >> 16) & 0xFFFF

def f32hex(x):
    return "0x%08x" % int(np.float32(x).view(np.uint32))

class Asm:
    def __init__(self):
        self.l = []
    def __call__(self, s):
        self.l.append("    " + s)
    def label(self, s):
        self.l.append(s + ":")
    def raw(self, s):
        self.l.append(s)
    def c(self, s):
        self.l.append("    ; " + s)
    def text(self):
        return "\n".join(self.l) + "\n"

def srd(a, sd, ptr_lo, nbytes):
    a(f"s_mov_b32 s{sd}, s{ptr_lo}")
    a(f"s_and_b32 s{sd+1}, s{ptr_lo+1}, 0xffff")
    a(f"s_mov_b32 s{sd+2}, {nbytes}")
    a(f"s_mov_b32 s{sd+3}, 0x00020000")

def kd(name, vgpr, sgpr, accum=None):
    if accum is None:
        accum = (vgpr + 3) // 4 * 4
    return f""".amdhsa_kernel {name}
  .amdhsa_next_free_vgpr {vgpr}
  .amdhsa_next_free_sgpr {sgpr}
  .amdhsa_accum_offset {accum}
  .amdhsa_group_segment_fixed_size 0
  .amdhsa_kernarg_size 80
  .amdhsa_user_sgpr_count 2
  .amdhsa_user_sgpr_kernarg_segment_ptr 1
  .amdhsa_system_sgpr_workgroup_id_x 1
.end_amdhsa_kernel
"""

def khead(a, name):
    a.raw(f".globl {name}")
    a.raw(".p2align 8")
    a.raw(f".type {name},@function")
    a.label(name)

STAMP = False
CUR = None
import os
MAPX = bool(os.environ.get('MAPX'))
PFW = bool(int(os.environ.get('PFW', '0')))
ROT1 = bool(int(os.environ.get('ROT1', '0')))
PFB = bool(int(os.environ.get('PFB', '1')))
FFT1 = bool(int(os.environ.get('FFT1', '0')))
PF3 = bool(int(os.environ.get('PF3', '1')))
XBAR = bool(int(os.environ.get('XBAR', '1')))
NPRE = int(os.environ.get('NPRE', '8'))
PF3T = int(os.environ.get('PF3T', '0'))
NS3 = int(os.environ.get('NS3', '16'))
K3N0 = int(os.environ.get('K3N0', '33'))
K3SC = int(os.environ.get('K3SC', '1'))
WPOS = int(os.environ.get('WPOS', '0'))
USLP = int(os.environ.get('USLP', '6'))
IDLEPF = int(os.environ.get('IDLEPF', '0'))
NF1 = int(os.environ.get('NF1', '14'))
NPF = int(os.environ.get('NPF', '14'))
PRE1 = int(os.environ.get('PRE1', '2'))
T1HI = float(os.environ.get('T1HI', '0.6'))
PFLO = float(os.environ.get('PFLO', '0.3'))
PFD0 = bool(int(os.environ.get('PFD0', '1')))
NOSIDE = bool(os.environ.get('NOSIDE'))
def dbg_begin(a):
    if globals()['STAMP'] == 'dbg':
        a("s_memrealtime s[80:81]")
        a("s_waitcnt lgkmcnt(0)")
        a("s_not_b32 s94, s80")
def dbg_end(a, k, wave_sreg):
    if globals()['STAMP'] == 'dbg':
        a("s_waitcnt vmcnt(0)")
        a("s_load_dwordx2 s[80:81], s[0:1], 64")
        a("s_memrealtime s[76:77]")
        a("s_waitcnt lgkmcnt(0)")
        a(f"s_sub_u32 s80, s80, {512*k}")
        a("s_subb_u32 s81, s81, 0")
        a("s_and_b32 s81, s81, 0xffff")
        a("s_mov_b32 s82, 256")
        a("s_mov_b32 s83, 0x00020000")
        a("v_mov_b32 v120, 0")
        a("s_mov_b64 exec, 1")
        a("v_mov_b32 v121, s94")
        a(f"buffer_atomic_umax v121, v120, s[80:83], 0 offen offset:{16*k}")
        a("v_mov_b32 v121, s76")
        a(f"buffer_atomic_umax v121, v120, s[80:83], 0 offen offset:{16*k+4}")
        a("s_not_b32 s94, s94")
        a("v_mov_b32 v121, s94")
        a(f"buffer_atomic_umax v121, v120, s[80:83], 0 offen offset:{16*k+8}")
        a("s_not_b32 s76, s76")
        a("v_mov_b32 v121, s76")
        a(f"buffer_atomic_umax v121, v120, s[80:83], 0 offen offset:{16*k+12}")

def stamp(a, i):
    if i == 0:
        dbg_begin(a)
    if globals()['STAMP'] and globals()['STAMP'] == globals()['CUR']:
        a("s_memtime s[80:81]")
        a("s_waitcnt lgkmcnt(0)")
        a(f"s_mov_b32 s{84+i}, s80")
        if i == 0:
            a("s_memrealtime s[80:81]")
            a("s_waitcnt lgkmcnt(0)")
            a(f"s_mov_b32 s94, s80")

def stamp_flush(a, n, wave_sreg):
    dbg_end(a, {"k0": 0, "k1": 1, "k3": 2}[globals()['CUR']], wave_sreg)
    if globals()['STAMP'] and globals()['STAMP'] == globals()['CUR']:
        a("s_load_dwordx2 s[80:81], s[0:1], 72")
        a("s_waitcnt lgkmcnt(0)")
        a("s_and_b32 s81, s81, 0xffff")
        a("s_mov_b32 s82, 0x10000000")
        a("s_mov_b32 s83, 0x00020000")
        a("s_lshl_b32 s79, s2, 4")
        a(f"s_add_u32 s79, s79, s{wave_sreg}")
        a("s_lshl_b32 s79, s79, 6")
        a(f"s_add_u32 s79, s79, {OFF_DBG}")
        a("v_mov_b32 v120, 0")
        a("s_memrealtime s[76:77]")
        a("s_waitcnt lgkmcnt(0)")
        a("v_mov_b32 v121, s94")
        a("buffer_store_dword v121, v120, s[80:83], s79 offen offset:56")
        a("v_mov_b32 v121, s76")
        a("buffer_store_dword v121, v120, s[80:83], s79 offen offset:60")
        for i in range(n):
            a(f"v_mov_b32 v121, s{84+i}")
            a(f"buffer_store_dword v121, v120, s[80:83], s79 offen offset:{4*i}")
OFF_DBG = 64 << 20
OFF_XNF = OFF_UF + SZ_UF
SZ_XNF = 64 * 28 * 1024
```

```python
import numpy as np

S, D, F, NK = 2048, 448, 1792, 225
NT3 = 29
NSTEP = 112 + NT3
OFF_HZ = 0
SZ_HZ = 64 * NSTEP * 1024
OFF_WDF = OFF_HZ + SZ_HZ
SZ_WDF = 14 * NSTEP * 1024
OFF_WT = OFF_WDF + SZ_WDF
SZ_WT = 226 * 8192
OFF_UF = OFF_WT + SZ_WT
SZ_UF = 512 * 64 * 64
WS_BYTES = 268435456

def bf16(x):
    u = int(np.float32(x).view(np.uint32))
    return ((u + 0x7FFF + ((u >> 16) & 1)) >> 16) & 0xFFFF

def f32hex(x):
    return "0x%08x" % int(np.float32(x).view(np.uint32))

class Asm:
    def __init__(self):
        self.l = []
    def __call__(self, s):
        self.l.append("    " + s)
    def label(self, s):
        self.l.append(s + ":")
    def raw(self, s):
        self.l.append(s)
    def c(self, s):
        self.l.append("    ; " + s)
    def text(self):
        return "\n".join(self.l) + "\n"

def srd(a, sd, ptr_lo, nbytes):
    a(f"s_mov_b32 s{sd}, s{ptr_lo}")
    a(f"s_and_b32 s{sd+1}, s{ptr_lo+1}, 0xffff")
    a(f"s_mov_b32 s{sd+2}, {nbytes}")
    a(f"s_mov_b32 s{sd+3}, 0x00020000")

def kd(name, vgpr, sgpr, accum=None):
    if accum is None:
        accum = (vgpr + 3) // 4 * 4
    return f""".amdhsa_kernel {name}
  .amdhsa_next_free_vgpr {vgpr}
  .amdhsa_next_free_sgpr {sgpr}
  .amdhsa_accum_offset {accum}
  .amdhsa_group_segment_fixed_size 0
  .amdhsa_kernarg_size 80
  .amdhsa_user_sgpr_count 2
  .amdhsa_user_sgpr_kernarg_segment_ptr 1
  .amdhsa_system_sgpr_workgroup_id_x 1
.end_amdhsa_kernel
"""

def khead(a, name):
    a.raw(f".globl {name}")
    a.raw(".p2align 8")
    a.raw(f".type {name},@function")
    a.label(name)

STAMP = False
CUR = None
import os
MAPX = bool(os.environ.get('MAPX'))
PFW = bool(int(os.environ.get('PFW', '0')))
ROT1 = bool(int(os.environ.get('ROT1', '0')))
PFB = bool(int(os.environ.get('PFB', '1')))
FFT1 = bool(int(os.environ.get('FFT1', '0')))
PF3 = bool(int(os.environ.get('PF3', '1')))
XBAR = bool(int(os.environ.get('XBAR', '1')))
NPRE = int(os.environ.get('NPRE', '8'))
PF3T = int(os.environ.get('PF3T', '0'))
NS3 = int(os.environ.get('NS3', '16'))
K3N0 = int(os.environ.get('K3N0', '33'))
K3SC = int(os.environ.get('K3SC', '1'))
WPOS = int(os.environ.get('WPOS', '0'))
USLP = int(os.environ.get('USLP', '6'))
IDLEPF = int(os.environ.get('IDLEPF', '0'))
K0MAP = int(os.environ.get('K0MAP', '1'))
K0SC = int(os.environ.get('K0SC', '0'))
DBGW = int(os.environ.get('DBGW', '8'))
NF1 = int(os.environ.get('NF1', '14'))
NPF = int(os.environ.get('NPF', '14'))
PRE1 = int(os.environ.get('PRE1', '2'))
T1HI = float(os.environ.get('T1HI', '0.6'))
PFLO = float(os.environ.get('PFLO', '0.3'))
PFD0 = bool(int(os.environ.get('PFD0', '1')))
NOSIDE = bool(os.environ.get('NOSIDE'))
def dbg_begin(a):
    if globals()['STAMP'] == 'dbg':
        a("s_memrealtime s[80:81]")
        a("s_waitcnt lgkmcnt(0)")
        a("s_not_b32 s94, s80")
def dbg_end(a, k, wave_sreg):
    if globals()['STAMP'] == 'dbg':
        a("s_waitcnt vmcnt(0)")
        a("s_load_dwordx2 s[80:81], s[0:1], 64")
        a("s_memrealtime s[76:77]")
        a("s_waitcnt lgkmcnt(0)")
        a(f"s_add_u32 s80, s80, {512*(2-k)}")
        a("s_addc_u32 s81, s81, 0")
        a(f"s_cmp_lg_u32 s{wave_sreg}, {DBGW if k == 0 else 0}")
        a(f"s_cbranch_scc1 DBGX{k}")
        a("s_and_b32 s82, s2, 0x19")
        a("s_cmp_lg_u32 s82, 0")
        a(f"s_cbranch_scc1 DBGX{k}")
        a("s_and_b32 s81, s81, 0xffff")
        a("s_mov_b32 s82, 256")
        a("s_mov_b32 s83, 0x00020000")
        a("v_mov_b32 v120, 0")
        a("s_mov_b64 exec, 1")
        a("v_mov_b32 v121, s94")
        a(f"buffer_atomic_umax v121, v120, s[80:83], 0 offen offset:{16*k}")
        a("v_mov_b32 v121, s76")
        a(f"buffer_atomic_umax v121, v120, s[80:83], 0 offen offset:{16*k+4}")
        a("s_not_b32 s94, s94")
        a("v_mov_b32 v121, s94")
        a(f"buffer_atomic_umax v121, v120, s[80:83], 0 offen offset:{16*k+8}")
        a("s_not_b32 s76, s76")
        a("v_mov_b32 v121, s76")
        a(f"buffer_atomic_umax v121, v120, s[80:83], 0 offen offset:{16*k+12}")
        a.label(f"DBGX{k}")

def stamp(a, i):
    if i == 0:
        dbg_begin(a)
    if globals()['STAMP'] and globals()['STAMP'] == globals()['CUR']:
        a("s_memtime s[80:81]")
        a("s_waitcnt lgkmcnt(0)")
        a(f"s_mov_b32 s{84+i}, s80")
        if i == 0:
            a("s_memrealtime s[80:81]")
            a("s_waitcnt lgkmcnt(0)")
            a(f"s_mov_b32 s94, s80")

def stamp_flush(a, n, wave_sreg):
    dbg_end(a, {"k0": 0, "k1": 1, "k3": 2}[globals()['CUR']], wave_sreg)
    if globals()['STAMP'] and globals()['STAMP'] == globals()['CUR']:
        a("s_load_dwordx2 s[80:81], s[0:1], 72")
        a("s_waitcnt lgkmcnt(0)")
        a("s_and_b32 s81, s81, 0xffff")
        a("s_mov_b32 s82, 0x10000000")
        a("s_mov_b32 s83, 0x00020000")
        a("s_lshl_b32 s79, s2, 4")
        a(f"s_add_u32 s79, s79, s{wave_sreg}")
        a("s_lshl_b32 s79, s79, 6")
        a(f"s_add_u32 s79, s79, {OFF_DBG}")
        a("v_mov_b32 v120, 0")
        a("s_memrealtime s[76:77]")
        a("s_waitcnt lgkmcnt(0)")
        a("v_mov_b32 v121, s94")
        a("buffer_store_dword v121, v120, s[80:83], s79 offen offset:56")
        a("v_mov_b32 v121, s76")
        a("buffer_store_dword v121, v120, s[80:83], s79 offen offset:60")
        for i in range(n):
            a(f"v_mov_b32 v121, s{84+i}")
            a(f"buffer_store_dword v121, v120, s[80:83], s79 offen offset:{4*i}")
OFF_DBG = 64 << 20
OFF_XNF = OFF_UF + SZ_UF
SZ_XNF = 64 * 28 * 1024
```

```python
from common import *
import common

XCH = 32 * 912
K0_LDS = XCH + 8 * 4352
TB = 96
ACC0 = 128
AF = 192
RD = 96
SL = 40
SO = 72
RAW = 40
FV = 56

def gen_k0(a, tabsym, gdsym):
    SC = " sc1" if common.K0SC else ""
    common.CUR = "k0"
    khead(a, "k0_kernel")
    a("s_cmp_ge_u32 s2, 256")
    a("s_cbranch_scc1 K0_end")
    a("s_load_dwordx16 s[4:19], s[0:1], 0")
    a("s_load_dwordx4 s[20:23], s[0:1], 64")
    a("s_getpc_b64 s[58:59]")
    a(f"s_add_u32 s58, s58, {tabsym}@rel32@lo+4")
    a(f"s_addc_u32 s59, s59, {tabsym}@rel32@hi+12")
    a("s_getpc_b64 s[56:57]")
    a(f"s_add_u32 s56, s56, {gdsym}@rel32@lo+4")
    a(f"s_addc_u32 s57, s57, {gdsym}@rel32@hi+12")
    a("v_lshrrev_b32 v1, 6, v0")
    a("s_nop 0")
    a("v_readfirstlane_b32 s52, v1")
    a("v_and_b32 v1, 63, v0")
    a("v_lshlrev_b32 v2, 4, v1")
    a("s_cmp_lg_u32 s52, 8")
    a("s_cbranch_scc1 K0_npf")
    a("s_mov_b32 s35, 0x00020000")
    a("s_getpc_b64 s[32:33]")
    a("s_add_u32 s32, s32, k0_kernel@rel32@lo+4")
    a("s_addc_u32 s33, s33, k0_kernel@rel32@hi+12")
    a("s_and_b32 s33, s33, 0xffff")
    a("s_mov_b32 s34, K3_end-k0_kernel")
    a("s_lshr_b32 s67, s2, 3")
    a("s_lshl_b32 s67, s67, 10")
    a("buffer_load_dwordx4 v[32:35], v2, s[32:35], s67 offen")
    a.label("K0_npf")
    a("s_bfe_u32 s53, s2, 0x20003")
    if common.K0MAP:
        a("s_lshr_b32 s54, s2, 6")
        a("s_lshl_b32 s54, s54, 4")
        a("s_and_b32 s55, s2, 7")
        a("s_lshl_b32 s55, s55, 1")
        a("s_add_u32 s54, s54, s55")
        a("s_bfe_u32 s55, s2, 0x10005")
        a("s_add_u32 s54, s54, s55")
    else:
        a("s_lshr_b32 s54, s2, 5")
        a("s_lshl_b32 s54, s54, 3")
        a("s_and_b32 s55, s2, 7")
        a("s_add_u32 s54, s54, s55")
    a("s_lshr_b32 s65, s54, 5")
    a("s_lshl_b32 s65, s65, 4")
    a("s_bfe_u32 s66, s54, 0x10004")
    a("s_lshl_b32 s66, s66, 2")
    a("s_add_u32 s65, s65, s66")
    a("s_lshr_b32 s66, s52, 2")
    a("s_lshl_b32 s66, s66, 3")
    a("s_and_b32 s67, s52, 3")
    a("s_add_u32 s66, s66, s67")
    a("s_add_u32 s55, s65, s66")
    a("s_lshl_b32 s55, s55, 4")
    a("s_and_b32 s68, s54, 15")
    a("s_add_u32 s55, s55, s68")
    a(f"s_mul_i32 s55, s55, {4*896}")
    a("s_mov_b32 s60, 0x3f803f80")
    for i in range(16):
        a(f"v_mov_b32 v{RAW+i}, 0")
    a("v_lshlrev_b32 v2, 4, v1")
    a("s_waitcnt lgkmcnt(0)")
    stamp(a, 0)
    srd(a, 24, 4, S * D * 2)
    a("s_cmp_eq_u32 s52, 8")
    a("s_cbranch_scc1 K0_nox")
    a("s_mov_b32 exec_hi, 0x00ffffff")
    for r in range(4):
        a(f"buffer_load_dwordx4 v[{RAW+4*r}:{RAW+4*r+3}], v2, s[24:27], s55 offen offset:{896*r}")
    a("s_mov_b32 exec_hi, -1")
    a.label("K0_nox")
    srd(a, 36, 22, WS_BYTES)
    srd(a, 40, 6, S * NK * 2)
    srd(a, 44, 8, S * NK * 2)
    srd(a, 48, 16, F * D * 2)
    srd(a, 28, 58, 8 * 28 * 1024)
    a("v_lshrrev_b32 v7, 5, v1")
    a("v_min_u32 v18, 55, v1")
    a("v_lshlrev_b32 v18, 4, v18")
    if common.XBAR:
        a("s_barrier")
    main = a
    a = Asm()
    SUM = [8, 9, 10, 11]
    T2 = [12, 13, 14, 15]
    MB = [88, 90, 92, 94]
    MB2 = [89, 91, 93, 95]
    VR = [20, 21, 22, 23]
    T2P = [24, 26, 28, 30]
    R4 = range(4)
    for r in R4:
        a(f"v_dot2_f32_bf16 v{SUM[r]}, v{RAW+4*r}, s60, 0")
        a(f"v_dot2_f32_bf16 v{T2[r]}, v{RAW+4*r+1}, s60, 0")
    for r in R4:
        a(f"v_dot2_f32_bf16 v{SUM[r]}, v{RAW+4*r+2}, s60, v{SUM[r]}")
        a(f"v_dot2_f32_bf16 v{T2[r]}, v{RAW+4*r+3}, s60, v{T2[r]}")
    a("s_nop 3")
    for r in R4:
        a(f"v_add_f32 v{SUM[r]}, v{SUM[r]}, v{T2[r]}")
    def reduce4(vs, sd):
        a("s_nop 1")
        for sh in (1, 2, 4, 8):
            for v in vs:
                a(f"v_add_f32_dpp v{v}, v{v}, v{v} row_shr:{sh} row_mask:0xf bank_mask:0xf bound_ctrl:0")
        for v in vs:
            a(f"v_add_f32_dpp v{v}, v{v}, v{v} row_bcast:15 row_mask:0xa bank_mask:0xf")
        for v in vs:
            a(f"v_add_f32_dpp v{v}, v{v}, v{v} row_bcast:31 row_mask:0xc bank_mask:0xf")
        for i, v in enumerate(vs):
            a(f"v_readlane_b32 s{sd+i}, v{v}, 63")
        a("s_nop 1")
    reduce4(SUM, 61)
    for r in R4:
        a(f"v_mov_b32 v{SUM[r]}, s{61+r}")
    for r in R4:
        a(f"v_mul_f32 v{SUM[r]}, {f32hex(1.0/448)}, v{SUM[r]}")
    for r in R4:
        a(f"v_cvt_pk_bf16_f32 v{MB[r]}, v{SUM[r]}, v{SUM[r]}")
    for r in R4:
        a(f"v_and_b32 v{MB[r]}, 0xffff0000, v{MB[r]}")
    for r in R4:
        for i in range(4):
            a(f"v_lshlrev_b32 v{FV+8*r+2*i}, 16, v{RAW+4*r+i}")
            a(f"v_and_b32 v{FV+8*r+2*i+1}, 0xffff0000, v{RAW+4*r+i}")
        a(f"v_mov_b32 v{MB2[r]}, v{MB[r]}")
        for i in range(0, 8, 2):
            a(f"v_pk_add_f32 v[{FV+8*r+i}:{FV+8*r+i+1}], v[{FV+8*r+i}:{FV+8*r+i+1}], v[{MB[r]}:{MB2[r]}] neg_lo:[0,1] neg_hi:[0,1]")
        a(f"v_pk_mul_f32 v[{T2P[r]}:{T2P[r]+1}], v[{FV+8*r}:{FV+8*r+1}], v[{FV+8*r}:{FV+8*r+1}]")
        for i in range(2, 8, 2):
            a(f"v_pk_fma_f32 v[{T2P[r]}:{T2P[r]+1}], v[{FV+8*r+i}:{FV+8*r+i+1}], v[{FV+8*r+i}:{FV+8*r+i+1}], v[{T2P[r]}:{T2P[r]+1}]")
        a(f"v_add_f32 v{VR[r]}, v{T2P[r]}, v{T2P[r]+1}")
    a("v_cmp_gt_u32 vcc, 56, v1")
    a("s_nop 1")
    for r in R4:
        a(f"v_cndmask_b32 v{VR[r]}, 0, v{VR[r]}, vcc")
    reduce4(VR, 61)
    for r in R4:
        a(f"v_mov_b32 v{VR[r]}, s{61+r}")
    def each(fmt):
        for r in R4:
            a(fmt.format(v=VR[r], m=SUM[r], mb=MB[r], t=T2[r]))
    each("v_mul_f32 v{v}, " + f32hex(1.0/448) + ", v{v}")
    each("v_sub_f32 v{t}, v{m}, v{mb}")
    each("v_fma_f32 v{v}, -v{t}, v{t}, v{v}")
    each("v_max_f32 v{v}, 0, v{v}")
    each("v_cvt_pk_bf16_f32 v{v}, v{v}, v{v}")
    each("v_and_b32 v{v}, 0xffff0000, v{v}")
    each("v_add_f32 v{v}, " + f32hex(1e-5) + ", v{v}")
    each("v_cvt_pk_bf16_f32 v{v}, v{v}, v{v}")
    each("v_and_b32 v{v}, 0xffff0000, v{v}")
    each("v_sqrt_f32 v{v}, v{v}")
    a("s_nop 0")
    each("v_cvt_pk_bf16_f32 v{v}, v{v}, v{v}")
    each("v_and_b32 v{v}, 0xffff0000, v{v}")
    each("v_rcp_f32 v{t}, v{v}")
    a(f"s_mul_i32 s61, s52, 912")
    a("v_lshlrev_b32 v3, 3, v1")
    a("v_add_u32 v3, s61, v3")
    for r in R4:
        for i in range(4):
            a(f"v_cvt_pk_bf16_f32 v{RAW+4*r+i}, v{FV+8*r+2*i}, v{FV+8*r+2*i+1}")
        for i in range(4):
            a(f"v_lshlrev_b32 v{FV+8*r+2*i}, 16, v{RAW+4*r+i}")
            a(f"v_and_b32 v{FV+8*r+2*i+1}, 0xffff0000, v{RAW+4*r+i}")
        a(f"v_mov_b32 v{MB[r]}, v{T2[r]}")
        a(f"v_mov_b32 v{MB2[r]}, v{T2[r]}")
        for i in range(0, 8, 2):
            a(f"v_pk_mul_f32 v[{FV+8*r+i}:{FV+8*r+i+1}], v[{FV+8*r+i}:{FV+8*r+i+1}], v[{MB[r]}:{MB2[r]}]")
        for i in range(4):
            a(f"v_cvt_pk_bf16_f32 v{RAW+4*r+i}, v{FV+8*r+2*i}, v{FV+8*r+2*i+1}")
        a(f"v_perm_b32 v{FV+8*r}, v{RAW+4*r+1}, v{RAW+4*r}, s70")
        a(f"v_perm_b32 v{FV+8*r+1}, v{RAW+4*r+3}, v{RAW+4*r+2}, s70")
        a(f"v_perm_b32 v{FV+8*r+2}, v{RAW+4*r+1}, v{RAW+4*r}, s71")
        a(f"v_perm_b32 v{FV+8*r+3}, v{RAW+4*r+3}, v{RAW+4*r+2}, s71")
        a("s_mov_b32 exec_hi, 0x00ffffff")
        a(f"ds_write_b64 v3, v[{FV+8*r}:{FV+8*r+1}] offset:{r*7296}")
        a(f"ds_write_b64 v3, v[{FV+8*r+2}:{FV+8*r+3}] offset:{r*7296+448}")
        a("s_mov_b32 exec_hi, -1")
    ln = [x.strip() for x in a.l]
    a = main
    def emit_ln(mem, lo=0.0, hi=0.9, post=()):
        n = len(ln)
        pos = [int(n * (lo + (hi - lo) * (i + 0.5) / max(1, len(mem)))) for i in range(len(mem))]
        mi = 0
        masked = False
        for i, x in enumerate(ln):
            a(x)
            if x.startswith("s_mov_b32 exec_hi"):
                masked = not x.endswith("-1")
            while mi < len(mem) and pos[mi] <= i and not masked:
                for y in mem[mi]: a(y)
                mi += 1
        assert mi == len(mem)
        for y in post: a(y)
        a("s_branch K0_ln3")
    a("s_mov_b32 s70, 0x05040100")
    a("s_mov_b32 s71, 0x07060302")
    a("s_cmp_eq_u32 s52, 8")
    a("s_cbranch_scc1 K0_w8")
    a("s_and_b32 s73, s52, 1")
    a("s_bfe_u32 s74, s52, 0x10001")
    a("s_lshr_b32 s75, s52, 2")
    a("s_lshl_b32 s76, s53, 1")
    a("s_add_u32 s76, s76, s73")
    a("s_lshl_b32 s77, s76, 1")
    a("s_add_u32 s77, s77, s74")
    a("s_lshl_b32 s77, s77, 1")
    a("s_add_u32 s77, s77, s75")
    a(f"s_mul_i32 s77, s77, {7*1024}")
    for t in range(7):
        a(f"buffer_load_dwordx4 v[{TB+4*t}:{TB+4*t+3}], v2, s[28:31], s77 offen offset:{(t&3)*1024}")
        if t == 3:
            a("s_add_u32 s77, s77, 4096")
    a("v_and_b32 v4, 31, v1")
    a("s_movk_i32 s61, 912")
    a("v_mul_lo_u32 v4, v4, s61")
    a("v_lshrrev_b32 v5, 4, v1")
    a("v_and_b32 v6, 7, v1")
    a("v_lshl_add_u32 v8, v5, 3, v6")
    a("v_mul_lo_u32 v8, v8, s61")
    a("v_and_b32 v9, 8, v1")
    a("v_add_u32 v8, v8, v9")
    a(f"v_mul_u32_u24 v5, {28*1024}, v5")
    a("v_lshl_add_u32 v5, v9, 6, v5")
    a("v_and_b32 v9, 4, v6")
    a("v_lshl_add_u32 v5, v9, 5, v5")
    a("v_and_b32 v9, 3, v6")
    a("v_lshl_add_u32 v16, v9, 4, v5")
    a("v_mov_b32 v5, v8")
    a("v_lshl_add_u32 v4, v7, 4, v4")
    a("s_mul_i32 s61, s74, 448")
    a("s_mul_i32 s62, s75, 224")
    a("s_add_u32 s61, s61, s62")
    a("v_add_u32 v4, s61, v4")
    a("s_mul_i32 s61, s53, 7")
    a("s_add_u32 s61, s61, s52")
    a("s_lshl_b32 s63, s61, 4")
    a("v_add_u32 v5, s63, v5")
    a("s_mul_i32 s69, s68, 112")
    a("s_add_u32 s69, s69, s61")
    a("s_lshl_b32 s69, s69, 10")
    a("s_lshl_b32 s62, s65, 4")
    a("s_add_u32 s69, s69, s62")
    a(f"s_add_u32 s69, s69, {OFF_XNF}")
    a("s_mul_i32 s61, s52, 4352")
    a(f"s_add_u32 s61, s61, {XCH}")
    a("v_add_u32 v17, s61, v2")
    a("v_and_b32 v13, 3, v1")
    a("v_lshrrev_b32 v15, 2, v1")
    a("s_lshl_b32 s62, s75, 4")
    a("v_add_u32 v15, s62, v15")
    a("v_mul_u32_u24 v32, 1088, v13")
    a("v_lshl_add_u32 v32, v15, 4, v32")
    a("s_mul_i32 s61, s73, 4352")
    a(f"s_add_u32 s61, s61, {XCH}")
    a("v_add_u32 v32, s61, v32")
    a("v_and_b32 v14, 1, v15")
    a("v_and_b32 v15, 30, v15")
    a("s_lshl_b32 s61, s76, 5")
    a("v_add_u32 v15, s61, v15")
    a("s_lshl_b32 s63, s74, 1")
    a("s_sub_u32 s63, 224, s63")
    a("s_cmp_eq_u32 s74, 0")
    a("s_cselect_b32 s61, 1, -1")
    a("s_cselect_b32 s62, 0, 448")
    a("s_cselect_b32 s64, 0, 0x80000000")
    a("v_mul_lo_u32 v19, v15, s61")
    a("v_add_u32 v19, s62, v19")
    a("v_add_u32 v19, v19, v14")
    a("v_lshlrev_b32 v19, 12, v19")
    a("v_lshl_add_u32 v19, v13, 4, v19")
    a("v_lshlrev_b32 v9, 31, v14")
    a("v_and_b32 v9, s64, v9")
    a("v_xor_b32 v33, 1.0, v9")
    a("v_xor_b32 v34, s64, v33")
    a("s_lshr_b32 s61, s68, 3")
    a("s_lshl_b32 s61, s61, 11")
    a("s_and_b32 s62, s68, 7")
    a("s_lshl_b32 s62, s62, 6")
    a("s_add_u32 s61, s61, s62")
    a("s_lshr_b32 s62, s54, 4")
    a("s_lshl_b32 s62, s62, 9")
    a("s_add_u32 s61, s61, s62")
    a(f"s_add_u32 s72, s61, {OFF_UF}")
    a("v_cmp_ge_u32 s[78:79], s63, v15")
    a("s_waitcnt vmcnt(7)")
    stamp(a, 1)
    emit_ln([], 0, 1, ["s_waitcnt vmcnt(0)"])
    a.label("K0_w8")
    a("v_and_b32 v5, 7, v1")
    a("v_and_b32 v6, 56, v1")
    a("s_and_b32 s66, s2, 3")
    a("s_lshl_b32 s66, s66, 6")
    a("v_add_u32 v6, s66, v6")
    a("v_min_u32 v6, 217, v6")
    a("s_lshr_b32 s66, s2, 4")
    a("s_bfe_u32 s67, s2, 0x20002")
    a("s_lshl_b32 s67, s67, 3")
    a("s_lshl_b32 s72, s66, 5")
    a("s_add_u32 s72, s72, s67")
    a("s_lshl_b32 s72, s72, 4")
    a(f"s_add_u32 s72, s72, {OFF_WT-8192}")
    a("s_lshl_b32 s66, s66, 7")
    a("s_add_u32 s66, s66, s67")
    a("s_mul_i32 s66, s66, 450")
    a("v_mul_u32_u24 v16, 450, v5")
    a("v_lshl_add_u32 v16, v6, 1, v16")
    a("v_add_u32 v17, 1, v6")
    a("v_lshlrev_b32 v17, 13, v17")
    a("v_lshl_add_u32 v17, v5, 4, v17")
    for j in range(4):
        a(f"buffer_load_dwordx4 v[{SL+4*j}:{SL+4*j+3}], v16, s[40:43], s66 offen")
        a(f"buffer_load_dwordx4 v[{SL+16+4*j}:{SL+16+4*j+3}], v16, s[44:47], s66 offen")
        if j < 3:
            a(f"s_add_u32 s66, s66, {32*450}")
    a("s_getpc_b64 s[48:49]")
    a("s_add_u32 s48, s48, ctab@rel32@lo+4")
    a("s_addc_u32 s49, s49, ctab@rel32@hi+12")
    a("s_and_b32 s49, s49, 0xffff")
    a(f"s_mov_b32 s50, {52*1024}")
    a("s_lshr_b32 s66, s2, 3")
    a("s_lshl_b32 s66, s66, 10")
    for y in ["buffer_load_dwordx4 v[32:35], v2, s[48:51], s66 offen",
              "s_add_u32 s66, s66, 32768",
              "buffer_load_dwordx4 v[32:35], v2, s[48:51], s66 offen"]:
        a(y)
    srd(a, 40, 12, D * F * 2)
    srd(a, 44, 14, D * F * 2)
    a("s_lshr_b32 s66, s2, 3")
    a(f"s_mul_i32 s66, s66, {14*3584}")
    a("s_and_b32 s67, s2, 7")
    a("s_lshr_b32 s67, s67, 1")
    a("s_mul_i32 s67, s67, 896")
    a("s_add_u32 s66, s66, s67")
    NF1 = common.NF1
    def pfl(r0, r1):
        for r in range(r0, r1):
            for m in range(2):
                a(f"buffer_load_dwordx4 v[32:35], v18, s[{40+4*m}:{43+4*m}], s66 offen offset:{3584*(r&1)}")
            if r & 1:
                a("s_add_u32 s66, s66, 7168")
    pfl(0, NF1)
    stamp(a, 1)
    a("s_barrier")
    a("s_barrier")
    a(f"s_waitcnt vmcnt({2+2*NF1})")
    stamp(a, 2)
    for kk in range(8):
        q, sel = kk >> 1, (70 + (kk & 1))
        for ri in range(2):
            for jp in range(2):
                a(f"v_perm_b32 v{SO+4*kk+2*ri+jp}, v{SL+16*ri+4*(2*jp+1)+q}, v{SL+16*ri+4*(2*jp)+q}, s{sel}")
        a(f"buffer_store_dwordx4 v[{SO+4*kk}:{SO+4*kk+3}], v17, s[36:39], s72 offen{SC}")
        a("s_add_u32 s72, s72, 8192")
    stamp(a, 3)
    pfl(NF1, 14)
    a("s_branch K0_fin")
    a.label("K0_ln3")
    a("s_waitcnt lgkmcnt(0)")
    stamp(a, 2)
    a("s_barrier")
    stamp(a, 3)
    AFL = [144, 148, 152, 156, 160, 164, 36]
    for t in range(7):
        a(f"ds_read_b128 v[{AFL[t]}:{AFL[t]+3}], v4 offset:{32*t}")
    a(f"ds_read_b64 v[{FV}:{FV+1}], v5")
    a(f"ds_read_b64 v[{FV+2}:{FV+3}], v5 offset:448")
    acc = f"v[{ACC0}:{ACC0+15}]"
    for t in range(7):
        a(f"s_waitcnt lgkmcnt({8-t})")
        a(f"v_mfma_f32_32x32x16_bf16 {acc}, v[{AFL[t]}:{AFL[t]+3}], v[{TB+4*t}:{TB+4*t+3}], {'0' if t == 0 else acc}")
    a("s_waitcnt lgkmcnt(0)")
    a(f"v_perm_b32 v{FV+4}, v{FV+2}, v{FV}, s70")
    a(f"v_perm_b32 v{FV+5}, v{FV+2}, v{FV}, s71")
    a(f"v_perm_b32 v{FV+6}, v{FV+3}, v{FV+1}, s70")
    a(f"v_perm_b32 v{FV+7}, v{FV+3}, v{FV+1}, s71")
    a("s_cmp_eq_u32 s52, 7")
    a("s_cbranch_scc1 K0_nx")
    a(f"buffer_store_dwordx4 v[{FV+4}:{FV+7}], v16, s[36:39], s69 offen{SC}")
    a.label("K0_nx")
    a("s_nop 7")
    a("s_nop 7")
    for g in range(4):
        a(f"ds_write_b128 v17, v[{ACC0+4*g}:{ACC0+4*g+3}] offset:{g*1088}")
    a("s_waitcnt lgkmcnt(0)")
    a("s_barrier")
    for p_ in range(2):
        for kh in range(2):
            for gg in range(2):
                r = RD + (p_ * 2 + kh) * 8 + gg * 4
                a(f"ds_read_b128 v[{r}:{r+3}], v32 offset:{(2*p_+4*kh)*4352+gg*512}")
    a("s_waitcnt lgkmcnt(4)")
    for i in range(8):
        a(f"v_add_f32 v{RD+i}, v{RD+i}, v{RD+8+i}")
    for i in range(8):
        a(f"v_mul_f32 v{RD+i}, v33, v{RD+i}")
    a("s_waitcnt lgkmcnt(0)")
    for i in range(8):
        a(f"v_add_f32 v{RD+16+i}, v{RD+16+i}, v{RD+24+i}")
    for i in range(8):
        a(f"v_fma_f32 v{RD+i}, v34, v{RD+16+i}, v{RD+i}")
    for i in range(4):
        a(f"v_cvt_pk_bf16_f32 v{RD+8+i}, v{RD+2*i}, v{RD+2*i+1}")
    a("s_mov_b64 exec, s[78:79]")
    a(f"buffer_store_dwordx4 v[{RD+8}:{RD+11}], v19, s[36:39], s72 offen{SC}")
    a("s_mov_b64 exec, -1")
    a.label("K0_fin")
    stamp(a, 4)
    stamp_flush(a, 5, 52)
    a.label("K0_end")
    a("s_endpgm")
```
